```python
import torch

def _softmax(x, axis=-1):
    return torch.softmax(x, dim=axis)
def _gelu(x):
    return torch.nn.functional.gelu(x, approximate="tanh")
def _silu(x):
    return torch.nn.functional.silu(x)
def _sigmoid(x):
    return torch.sigmoid(x)
def _layernorm(x, axis=-1, eps=1e-5):
    m = x.mean(dim=axis, keepdim=True)
    v = x.var(dim=axis, keepdim=True, unbiased=False)
    return (x - m) / torch.sqrt(v + eps)
def _scatter_add(tgt, idx, src, axis=0):
    return tgt.clone().index_add_(axis, idx, src)
def _segment_sum(src, seg, n):
    out = torch.zeros((n,) + src.shape[1:], dtype=src.dtype)
    return out.index_add_(0, seg, src)
def _pad(x, pw):
    flat = tuple(v for pair in reversed(pw) for v in pair)
    return torch.nn.functional.pad(x, flat)

kernel_name = 'parallel_sum__gqa_block_cached__geglu_ffn__decode'

def setup_inputs():

    _w = (lambda a: (lambda t: t.to(torch.bfloat16) if t.is_floating_point() else t)(torch.as_tensor(a)))
    def _A_setup():
        B, Sq, D = 1, 1, 512
        Hq, Hkv, Sk, Dh = 32, 32, 4096, 128
        assert Hq % Hkv == 0, (Hq, Hkv)
        return {
            "x": _w((lambda *s: torch.randn(*s, dtype=torch.bfloat16) * 0.05)(B, Sq, D)),
            "k_cache": _w((lambda *s: torch.randn(*s, dtype=torch.bfloat16) * 3.2)(B, Hkv, Sk, Dh)),
            "v_cache": _w((lambda *s: torch.randn(*s, dtype=torch.bfloat16) * 1.6)(B, Hkv, Sk, Dh)),
            "wq": _w((lambda *s: torch.randn(*s, dtype=torch.bfloat16) * 3.2)(D, Hq * Dh) * (D ** -0.5)),
            "wo": _w((lambda *s: torch.randn(*s, dtype=torch.bfloat16) * 1.6)(Hq * Dh, D) * ((Hq * Dh) ** -0.5)),
        }
    _A_in = _A_setup()

    def _B_setup():
        B, S, D, F = 1, 1, 512, 1376
        return {
            "x": _w((lambda *s: torch.randn(*s, dtype=torch.bfloat16) * 0.05)(B, S, D)),
            "w_gate": _w((lambda *s: torch.randn(*s, dtype=torch.bfloat16) * 0.05)(D, F)),
            "w_up": _w((lambda *s: torch.randn(*s, dtype=torch.bfloat16) * 0.05)(D, F)),
            "w_down": _w((lambda *s: torch.randn(*s, dtype=torch.bfloat16) * 0.05)(F, D)),
        }
    _B_in = _B_setup()

    return {
        "A_x": _A_in["x"],
        "A_k_cache": _A_in["k_cache"],
        "A_v_cache": _A_in["v_cache"],
        "A_wq": _A_in["wq"],
        "A_wo": _A_in["wo"],
        "B_x": _B_in["x"],
        "B_w_gate": _B_in["w_gate"],
        "B_w_up": _B_in["w_up"],
        "B_w_down": _B_in["w_down"],
    }

def reference(A_x, A_k_cache, A_v_cache, A_wq, A_wo, B_x, B_w_gate, B_w_up, B_w_down):
    def _A_ref(x, k_cache, v_cache, wq, wo):
        B, Sq, D = x.shape
        Hq, Dh = 32, 128
        Hkv = k_cache.shape[1]
        rep = Hq // Hkv
        q = (lambda x, *d: x.permute(*d))((x @ wq).reshape(B, Sq, Hq, Dh), 0, 2, 1, 3)
        k = (lambda x, n, axis: torch.repeat_interleave(x, n, dim=axis))(k_cache, rep, axis=1)
        v = (lambda x, n, axis: torch.repeat_interleave(x, n, dim=axis))(v_cache, rep, axis=1)
        scores = torch.einsum("bhqd,bhkd->bhqk", q, k) * (Dh ** -0.5)
        p = _softmax(scores, axis=-1)
        o = torch.einsum("bhqk,bhkd->bhqd", p, v)
        return (lambda x, *d: x.permute(*d))(o, 0, 2, 1, 3).reshape(B, Sq, Hq * Dh) @ wo

    def _B_ref(x, w_gate, w_up, w_down):
        return (_gelu(x @ w_gate) * (x @ w_up)) @ w_down

    x = A_x
    xn = _layernorm(x, axis=-1)
    return x + _A_ref(xn, A_k_cache, A_v_cache, A_wq, A_wo) + _B_ref(xn, B_w_gate, B_w_up, B_w_down)
```

```python
import re
KN = "parallel_sum__gqa_block_cached__geglu_ffn__decode_kernel"

class Asm:
    def __init__(self):
        self.L = []
    def __call__(self, s):
        for ln in s.split("\n"):
            ln = ln.strip()
            if ln: self.L.append(ln)
    def text(self):
        out = []
        for ln in self.L:
            if ln.endswith(":") or ln.startswith(".") or ln.startswith(";"): out.append(ln)
            else: out.append("  " + ln)
        return "\n".join(out) + "\n"

def regs(tok):
    tok = tok.strip().lstrip("-")
    if tok.startswith("abs(") : tok = tok[4:-1]
    if tok.startswith("|"): tok = tok.strip("|")
    m = re.fullmatch(r"([vsa])(\d+)", tok)
    if m: return {(m.group(1), int(m.group(2)))}
    m = re.fullmatch(r"([vsa])\[(\d+):(\d+)\]", tok)
    if m: return {(m.group(1), k) for k in range(int(m.group(2)), int(m.group(3)) + 1)}
    if tok == "vcc": return {("s", "vcc")}
    if tok == "exec": return {("s", "exec")}
    if tok == "m0": return {("s", "m0")}
    return set()

TRANS = ("v_exp_f32", "v_log_f32", "v_rcp_f32", "v_rsq_f32", "v_sqrt_f32", "v_sin_f32", "v_cos_f32")
def parse(ln):
    ln = ln.split(";")[0].strip()
    p = ln.split(None, 1)
    op = p[0]
    rest = p[1] if len(p) > 1 else ""
    toks = [t.strip() for t in re.split(r",(?![^\[]*\])", rest)] if rest else []
    if toks:
        last = toks[-1].split()
        mods = last[1:]; toks[-1] = last[0] if last else ""
    else: mods = []
    W, R = set(), set()
    isvalu = op.startswith("v_") and not op.startswith("v_mfma")
    ismfma = op.startswith("v_mfma")
    vmem = op.startswith(("buffer_", "global_", "flat_"))
    ds = op.startswith("ds_")
    if vmem:
        st = "store" in op or ("atomic" in op and "sc0" not in mods)
        if "load" in op and "lds" not in mods:
            W |= regs(toks[0]); [R.update(regs(t)) for t in toks[1:]]
        else:
            [R.update(regs(t)) for t in toks]
    elif ds:
        if "read" in op or "bpermute" in op or "swizzle" in op or "rtn" in op:
            W |= regs(toks[0]); [R.update(regs(t)) for t in toks[1:]]
        else: [R.update(regs(t)) for t in toks]
    elif op.startswith("s_"):
        if op.startswith(("s_cmp", "s_cbranch", "s_branch", "s_waitcnt", "s_nop", "s_barrier", "s_setprio", "s_sleep", "s_endpgm", "s_bitcmp")):
            [R.update(regs(t)) for t in toks]
        else:
            if toks: W |= regs(toks[0])
            [R.update(regs(t)) for t in toks[1:]]
            if "saveexec" in op: W.add(("s", "exec"))
    else:
        W |= regs(toks[0]); [R.update(regs(t)) for t in toks[1:]]
        if op.startswith(("v_add_co", "v_sub_co", "v_addc_co", "v_subb_co")): W |= regs(toks[1]); R -= regs(toks[1]) if not op.startswith(("v_addc", "v_subb")) else set()
        if op.startswith(("v_fmac", "v_dot2c", "v_mac")) or "dpp" in op or "row_" in rest or "quad_perm" in rest: R |= regs(toks[0])
        if op.startswith("v_permlane"): W |= regs(toks[1]); R |= regs(toks[0])
        if op.startswith("v_cndmask") and len(toks) == 3: R.add(("s", "vcc"))
        if op.startswith("v_cmpx"): W.add(("s", "exec"))
    isdpp = isvalu and ("dpp" in op or "row_" in rest or "quad_perm" in rest)
    srcc = regs(toks[3]) if ismfma and len(toks) > 3 else set()
    srcab = (regs(toks[1]) | regs(toks[2])) if ismfma else set()
    return dict(op=op, W=W, R=R, valu=isvalu, mfma=ismfma, vmem=vmem, ds=ds, dpp=isdpp, toks=toks, mods=mods, srcc=srcc, srcab=srcab)

def lint(lines):
    ins = []
    for n, ln in enumerate(lines):
        if ln.endswith(":") or ln.startswith(".") or ln.startswith(";"): continue
        d = parse(ln); d["n"] = n; d["ln"] = ln
        d["ws"] = int(d["toks"][0]) + 1 if d["op"] == "s_nop" else 1
        ins.append(d)
    bad = []
    for j, c in enumerate(ins):
        dist = 0
        for i in range(j - 1, max(-1, j - 24), -1):
            p = ins[i]
            if p["op"] in ("s_endpgm", "s_branch"): break
            need = 0
            vW = {r for r in p["W"] if r[0] in "va"}; sW = {r for r in p["W"] if r[0] == "s"}
            if p["valu"]:
                if c["dpp"] and vW & c["R"]: need = max(need, 2)
                if c["mfma"] and vW & c["R"]: need = max(need, 2)
                if c["op"].startswith("v_permlane") and vW & c["R"]: need = max(need, 2)
                if c["op"].startswith(("v_readlane", "v_readfirstlane")) and vW & c["R"]: need = max(need, 1)
                if p["op"].startswith(TRANS) and c["valu"] and vW & c["R"]: need = max(need, 1)
                if p["op"].startswith("v_dot"):
                    same = p["op"].split("_e32")[0] == c["op"].split("_e32")[0]
                    if vW & (c["R"] | c["W"]) and (c["valu"] or c["mfma"] or c["vmem"] or c["ds"]):
                        if same:
                            ab = regs(c["toks"][1]) | regs(c["toks"][2])
                            if vW & ab: need = max(need, 3)
                        else: need = max(need, 3)
                if sW & c["R"]:
                    if c["valu"]: need = max(need, 4 if c["op"].startswith(("v_readlane", "v_writelane")) else 2)
                    if c["vmem"]: need = max(need, 5)
                if ("s", "exec") in sW and (c["dpp"] or c["mfma"] or c["op"].startswith(("v_permlane", "v_readlane", "v_readfirstlane"))): need = max(need, 5)
            if p["mfma"]:
                ps = 8 if "16x16x32" in p["op"] else 12
                if c["mfma"]:
                    if vW & c["srcab"]: need = max(need, ps)
                    if (vW & c["srcc"]) and vW != c["srcc"]: need = max(need, ps - 2)
                elif vW & (c["R"] | c["W"]): need = max(need, ps)
                if c["valu"] and p["srcc"] & c["W"]: need = max(need, 3 if ps == 8 else 7)
            if p["vmem"] and "store" in p["op"] and ("x4" in p["op"] or "x3" in p["op"]):
                data = regs(p["toks"][0]) if p["op"].startswith("buffer") else regs(p["toks"][1])
                if data & c["W"]: need = max(need, 2 if c["valu"] else 1)
            if p["op"].startswith("s_") and ("s", "m0") in sW and c["vmem"] and "lds" in c["mods"]: need = max(need, 1)
            if need > dist: bad.append((p["ln"], c["ln"], need, dist))
            dist += p["ws"]
            if dist >= 20: break
    return bad

def footer(nv=256, ns=96, name=KN):
    return f""".section .rodata,"a"
.p2align 6
.amdhsa_kernel {name}
  .amdhsa_next_free_vgpr {nv}
  .amdhsa_next_free_sgpr {ns}
  .amdhsa_accum_offset {nv}
  .amdhsa_group_segment_fixed_size 0
  .amdhsa_kernarg_size 96
  .amdhsa_user_sgpr_count 2
  .amdhsa_user_sgpr_kernarg_segment_ptr 1
  .amdhsa_system_sgpr_workgroup_id_x 1
.end_amdhsa_kernel
"""
```

```python
import sys
from asmlib import *

REC = 4096
QP, GU, OP, YP, ML = 0, 512, 1024, 3072, 3328
L_XN, L_Q, L_FLAG, L_P, L_Y = 0, 1024, 1280, 2048, 4096
LDS = 6144
SPIN = 20000
LOG2E = 0x3fb8aa3b

def gen(stamps=False, kvflag="nt", wflag="nt", pre_k=8):
    a = Asm()
    st = {"n": 0}
    def stamp(j):
        if stamps: a(f"s_memrealtime s[{64+2*j}:{65+2*j}]")
    def srd(d, b, n):
        a(f"s_mov_b32 s{d}, s{b}\ns_mov_b32 s{d+1}, s{b+1}\ns_mov_b32 s{d+2}, {n}\ns_mov_b32 s{d+3}, 0x20000")
    def allred16(op, r):
        for k in (8, 4, 2, 1):
            a(f"s_nop 1\n{op}_dpp v{r}, v{r}, v{r} row_ror:{k} row_mask:0xf bank_mask:0xf")
    def allred64(op, r, t):
        allred16(op, r)
        for sw in ("v_permlane16_swap_b32", "v_permlane32_swap_b32"):
            a(f"v_mov_b32 v{t}, v{r}\ns_nop 1\n{sw} v{r}, v{t}\n{op} v{r}, v{r}, v{t}")
    def allred8(op, rs):
        for m in ("quad_perm:[1,0,3,2]", "quad_perm:[2,3,0,1]", "row_half_mirror"):
            if len(rs) < 3: a(f"s_nop {2-len(rs)}")
            for r in rs: a(f"{op}_dpp v{r}, v{r}, v{r} {m} row_mask:0xf bank_mask:0xf")
    def bulk(t0, t1):
        for t in range(t0, t1):
            if t % 4 == 0: a(f"s_add_u32 s34, s33, {t*1024}")
            a(f"buffer_load_dwordx4 v[{128+4*t}:{131+4*t}], v3, s[36:39], s34 offen offset:{(t%4)*1024} {kvflag}")
    def spin_tail(lbl):
        a(f"s_sub_u32 s35, s35, 1\ns_cmp_lg_u32 s35, 0\ns_cbranch_scc1 {lbl}")
    def write_stamps():
        if not stamps: return
        a("s_waitcnt lgkmcnt(0)\ns_mov_b64 exec, 1")
        a(f"s_lshl_b32 s34, s2, 3\ns_add_u32 s34, s34, s31\ns_lshl_b32 s34, s34, 7\ns_add_u32 s34, s34, {128<<20}\nv_mov_b32 v2, s34")
        for j in range(16):
            a(f"v_mov_b32 v4, s{64+2*j}\nv_mov_b32 v5, s{65+2*j}\nbuffer_store_dwordx2 v[4:5], v2, s[40:43], 0 offen offset:{8*j}")

    a(f"; @launch grid=(256,1,1) block=(512,1,1) lds={LDS}")
    a('.amdgcn_target "amdgcn-amd-amdhsa--gfx950"\n.text')
    a(f".globl {KN}\n.p2align 8\n.type {KN},@function\n{KN}:")
    if stamps:
        for j in range(1, 16): a(f"s_mov_b64 s[{64+2*j}:{65+2*j}], 0")
    stamp(0)
    a("""s_load_dwordx16 s[4:19], s[0:1], 0
    s_load_dwordx8 s[20:27], s[0:1], 64
    s_cmp_ge_u32 s2, 256
    s_cbranch_scc1 L_end
    v_lshrrev_b32 v1, 6, v0
    v_and_b32 v2, 63, v0
    s_and_b32 s3, s2, 7
    v_readfirstlane_b32 s31, v1
    s_lshr_b32 s28, s2, 3
    s_lshl_b32 s3, s3, 2
    s_and_b32 s29, s28, 3
    s_or_b32 s29, s29, s3
    s_lshr_b32 s30, s28, 2
    v_lshlrev_b32 v3, 4, v2
    s_and_b32 s32, s31, 3
    s_lshl_b32 s33, s29, 20
    s_lshl_b32 s3, s30, 17
    s_add_u32 s33, s33, s3
    s_lshl_b32 s3, s32, 15
    s_add_u32 s33, s33, s3
    s_lshl_b32 s44, s29, 3
    s_add_u32 s45, s44, s30
    s_lshl_b32 s44, s44, 12
    s_lshl_b32 s45, s45, 12
    s_cmp_ge_u32 s31, 4
    s_cbranch_scc1 L_K""")
    a("s_setprio 3\ns_cmp_lg_u32 s31, 0\ns_cbranch_scc1 L_V_other")
    a("""v_lshrrev_b32 v8, 4, v2
    v_and_b32 v9, 15, v2
    s_lshl_b32 s3, s30, 6
    v_lshl_add_u32 v10, v8, 4, s3
    v_lshlrev_b32 v11, 13, v10
    v_lshl_add_u32 v11, v9, 4, v11
    s_lshl_b32 s46, s29, 8
    v_and_b32 v12, 7, v9
    s_mul_i32 s3, s29, 6
    v_add_u32 v12, s3, v12
    v_min_u32 v12, 171, v12
    v_mul_u32_u24 v13, 2752, v10
    v_lshl_add_u32 v12, v12, 4, v13
    v_add_u32 v12, 2752, v12
    v_mov_b32 v13, 0
    v_cmp_lt_u32 vcc, 7, v9
    v_mov_b32 v28, 0
    v_mov_b32 v29, 0
    s_waitcnt lgkmcnt(0)""")
    stamp(1)
    a("global_load_dwordx4 v[4:7], v3, s[4:5]")
    srd(48, 10, 0x400000)
    for t in range(16):
        a(f"s_add_u32 s34, s46, {t*8192}")
        a(f"buffer_load_dwordx4 v[{128+4*t}:{131+4*t}], v11, s[48:51], s34 offen {wflag}")
    a("""v_mov_b32 v14, s16
    v_mov_b32 v15, s17
    v_mov_b32 v16, s18
    v_mov_b32 v17, s19
    v_cndmask_b32 v14, v14, v16, vcc
    v_cndmask_b32 v15, v15, v17, vcc
    v_lshl_add_u64 v[14:15], v[12:13], 0, v[14:15]
    s_mov_b64 s[52:53], 8256""")
    for t in range(16):
        if t % 3 == 0 and t: a("v_lshl_add_u64 v[14:15], v[14:15], 0, s[52:53]")
        a(f"global_load_dwordx4 v[{192+4*t}:{195+4*t}], v[14:15], off offset:{(t%3-1)*2752} {wflag}")
    a(f"ds_write_b64 v28, v[28:29] offset:{L_FLAG}\ns_waitcnt lgkmcnt(0)\ns_barrier")
    stamp(2)
    srd(40, 26, 0x10000000)
    def cntaddr():
        a("""s_and_b32 s3, s29, 3
        s_lshl_b32 s3, s3, 4
        s_lshr_b32 s34, s29, 2
        s_add_u32 s3, s3, s34
        s_lshl_b32 s3, s3, 2
        v_mov_b32 v29, s3
        v_mov_b32 v30, 1""")
    cntaddr()
    def selectors():
        a("""v_and_b32 v8, 1, v2
        v_mov_b32 v9, 0x0c0c0100
        v_mov_b32 v10, 0x01000c0c
        v_cmp_eq_u32 vcc, 1, v8
        v_mov_b32 v11, 0x0c0c0302
        v_mov_b32 v12, 0x03020c0c
        v_cndmask_b32 v9, v9, v10, vcc
        v_cndmask_b32 v11, v11, v12, vcc
        v_bfe_u32 v8, v2, 1, 3
        v_mov_b32 v10, 0x0c0c0c0c""")
        for r in range(4):
            a(f"v_cmp_eq_u32 vcc, {r}, v8\ns_nop 1\nv_cndmask_b32 v{32+2*r}, v10, v9, vcc\nv_cndmask_b32 v{33+2*r}, v10, v11, vcc")
    selectors()
    a("s_waitcnt vmcnt(32)")
    stamp(4)
    for k in range(4):
        a(f"v_lshlrev_b32 v{8+2*k}, 16, v{4+k}\nv_and_b32 v{9+2*k}, 0xffff0000, v{4+k}")
    a("""v_add_f32 v16, v8, v9
    v_add_f32 v17, v10, v11
    v_add_f32 v18, v12, v13
    v_add_f32 v19, v14, v15
    v_add_f32 v16, v16, v17
    v_add_f32 v18, v18, v19
    v_add_f32 v16, v16, v18""")
    allred64("v_add_f32", 16, 17)
    a("v_mul_f32 v16, 0x3b000000, v16")
    a("v_sub_f32 v18, v8, v16\nv_mul_f32 v17, v18, v18")
    for k in range(1, 8): a(f"v_sub_f32 v18, v{8+k}, v16\nv_fmac_f32 v17, v18, v18")
    allred64("v_add_f32", 17, 18)
    a("""v_mul_f32 v17, 0x3b000000, v17
    v_cvt_pk_bf16_f32 v16, v16, v17
    v_and_b32 v17, 0xffff0000, v16
    v_lshlrev_b32 v16, 16, v16
    v_add_f32 v17, 0x3727c5ac, v17
    v_cvt_pk_bf16_f32 v17, v17, v17
    v_and_b32 v17, 0xffff0000, v17
    v_sqrt_f32 v17, v17
    s_nop 0
    v_cvt_pk_bf16_f32 v17, v17, v17
    v_and_b32 v17, 0xffff0000, v17
    v_rcp_f32 v18, v17""")
    for k in range(4):
        lo, hi = 8 + 2 * k, 9 + 2 * k
        a(f"""v_sub_f32 v{lo}, v{lo}, v16
        v_sub_f32 v{hi}, v{hi}, v16
        v_cvt_pk_bf16_f32 v19, v{lo}, v{hi}
        v_lshlrev_b32 v{lo}, 16, v19
        v_and_b32 v{hi}, 0xffff0000, v19
        v_mul_f32 v19, v{lo}, v18
        v_mul_f32 v20, v{hi}, v18
        v_fma_f32 v{lo}, -v19, v17, v{lo}
        v_fma_f32 v{hi}, -v20, v17, v{hi}
        v_fma_f32 v19, v{lo}, v18, v19
        v_fma_f32 v20, v{hi}, v18, v20
        v_cvt_pk_bf16_f32 v{4+k}, v19, v20""")
    a(f"""ds_write_b128 v3, v[4:7] offset:{L_XN}
    v_lshrrev_b32 v8, 4, v2
    s_lshl_b32 s3, s30, 7
    v_lshl_add_u32 v8, v8, 5, s3
    s_waitcnt lgkmcnt(0)
    ds_read_b128 v[16:19], v8 offset:{L_XN}
    ds_read_b128 v[20:23], v8 offset:{L_XN+16}
    v_and_b32 v9, 15, v2
    v_lshlrev_b32 v9, 5, v9
    v_and_b32 v10, 16, v2
    v_add_u32 v31, v9, v10
    global_load_dword v28, v29, s[24:25] sc1
    s_waitcnt lgkmcnt(0)""")
    stamp(5)
    for t in range(16):
        A = 40 + 4 * (t & 1)
        for r in range(4): a(f"v_perm_b32 v{A+r}, v{16+t//2}, v{16+t//2}, v{32+2*r+(t&1)}")
        if t == 0: a("s_nop 0\ns_waitcnt vmcnt(17)")
        else: a("s_nop 1")
        a(f"v_mfma_f32_16x16x32_bf16 v[48:51], v[{A}:{A+3}], v[{128+4*t}:{131+4*t}], {'0' if t == 0 else 'v[48:51]'}")
    a(f"""v_mov_b32 v10, 0
    s_mov_b32 s35, {SPIN*8}
    L_clr:
    ds_read_b32 v9, v10 offset:{L_FLAG+4}
    s_waitcnt lgkmcnt(0)
    v_readfirstlane_b32 s3, v9
    s_cmp_lg_u32 s3, 0
    s_cbranch_scc1 L_clr_done""")
    spin_tail("L_clr")
    a(f"L_clr_done:\ns_mov_b32 exec_hi, 0\ns_nop 4\nbuffer_store_dwordx4 v[48:51], v31, s[40:43], s45 offen offset:{QP} sc1\ns_mov_b32 exec_hi, -1")
    stamp(6)
    for t in range(16):
        A = 40 + 4 * (t & 1)
        for r in range(4): a(f"v_perm_b32 v{A+r}, v{16+t//2}, v{16+t//2}, v{32+2*r+(t&1)}")
        if t == 0: a("s_nop 0\ns_waitcnt vmcnt(2)")
        else: a("s_nop 1")
        a(f"v_mfma_f32_16x16x32_bf16 v[52:55], v[{A}:{A+3}], v[{192+4*t}:{195+4*t}], {'0' if t == 0 else 'v[52:55]'}")
    a(f"s_mov_b32 exec_hi, 0\ns_nop 6\nbuffer_store_dwordx4 v[52:55], v31, s[40:43], s45 offen offset:{GU} sc1\ns_mov_b32 exec_hi, -1")
    a(f"""s_mov_b32 s35, {SPIN}
    s_waitcnt vmcnt(2)
    L_cnt:
    v_readfirstlane_b32 s3, v28
    s_cmp_eq_u32 s3, 8
    s_cbranch_scc1 L_cnt_done
    global_load_dword v28, v29, s[24:25] sc1
    s_waitcnt vmcnt(0)""")
    spin_tail("L_cnt")
    a("L_cnt_done:")
    stamp(7)
    a(f"""v_lshrrev_b32 v8, 5, v2
    v_and_b32 v9, 31, v2
    v_lshlrev_b32 v8, 12, v8
    v_lshl_add_u32 v8, v9, 4, v8
    v_lshlrev_b32 v9, 3, v9
    s_mov_b32 s35, {SPIN}
    L_qp:""")
    for u in range(4):
        a(f"s_add_u32 s34, s44, {u*2*REC}\nbuffer_load_dwordx4 v[{56+4*u}:{59+4*u}], v8, s[40:43], s34 offen offset:{QP} sc1")
    a("s_waitcnt vmcnt(0)")
    for k in range(4): a(f"v_add_f32 v{56+k}, v{56+k}, v{60+k}\nv_add_f32 v{64+k}, v{64+k}, v{68+k}")
    for k in range(4): a(f"v_add_f32 v{56+k}, v{56+k}, v{64+k}")
    for k in range(4): a(f"v_mov_b32 v{60+k}, v{56+k}")
    a("s_nop 1")
    for k in range(4): a(f"v_permlane32_swap_b32 v{56+k}, v{60+k}")
    for k in range(4): a(f"v_add_f32 v{56+k}, v{56+k}, v{60+k}")
    a("""v_cmp_u_f32 vcc, v56, v57
    v_cmp_u_f32 s[52:53], v58, v59
    s_or_b64 vcc, vcc, s[52:53]
    s_cbranch_vccz L_qp_done""")
    spin_tail("L_qp")
    a(f"""L_qp_done:
    v_cvt_pk_bf16_f32 v56, v56, v57
    v_cvt_pk_bf16_f32 v57, v58, v59
    v_mov_b32 v10, 0
    ds_write_b64 v9, v[56:57] offset:{L_Q}
    s_waitcnt lgkmcnt(0)
    ds_write_b32 v10, v30 offset:{L_FLAG}""")
    stamp(8)
    a("s_branch L_V_load")
    a("""L_V_other:
    v_mov_b32 v24, -1
    v_mov_b32 v25, -1
    v_mov_b32 v26, -1
    v_mov_b32 v27, -1
    s_waitcnt lgkmcnt(0)""")
    srd(40, 26, 0x10000000)
    a("s_cmp_lg_u32 s31, 1\ns_cbranch_scc1 L_V_idle")
    for k in range(4):
        a(f"buffer_store_dwordx4 v[24:27], v3, s[40:43], s45 offen offset:{1024*k} sc1")
    a("s_barrier")
    cntaddr()
    a(f"""v_mov_b32 v10, 0
    s_mov_b64 exec, 1
    s_waitcnt vmcnt(0)
    global_atomic_add v29, v30, s[24:25] sc1
    ds_write_b32 v10, v30 offset:{L_FLAG+4}
    s_mov_b64 exec, -1""")
    stamp(3)
    a("s_branch L_V_sel\nL_V_idle:\ns_barrier\nL_V_sel:")
    selectors()
    a("""v_and_b32 v9, 15, v2
    v_lshlrev_b32 v9, 5, v9
    v_and_b32 v10, 16, v2
    v_add_u32 v31, v9, v10""")
    a("L_V_load:\ns_setprio 0")
    srd(36, 8, 0x2000000)
    bulk(0, 32)
    stamp(9)
    a(f"""v_lshrrev_b32 v8, 4, v2
    s_lshl_b32 s3, s32, 8
    v_lshl_add_u32 v8, v8, 6, s3
    s_lshl_b32 s3, s32, 9
    s_add_u32 s46, s45, s3
    s_barrier""")
    stamp(10)
    for k in range(4): a(f"ds_read_b128 v[{56+4*k}:{59+4*k}], v8 offset:{L_P+16*k}")
    a("s_waitcnt lgkmcnt(0)")
    for t in range(32):
        A = 40 + 4 * (t & 1)
        for r in range(4): a(f"v_perm_b32 v{A+r}, v{56+t//2}, v{56+t//2}, v{32+2*r+(t&1)}")
        a(f"s_nop 0\ns_waitcnt vmcnt({31-t})")
        a(f"v_mfma_f32_16x16x32_bf16 v[48:51], v[{A}:{A+3}], v[{128+4*t}:{131+4*t}], {'0' if t == 0 else 'v[48:51]'}")
    stamp(11)
    a(f"s_mov_b32 exec_hi, 0\ns_nop 6\nbuffer_store_dwordx4 v[48:51], v31, s[40:43], s46 offen offset:{OP} sc1")
    write_stamps()
    a("s_endpgm")
    a("L_K:\ns_setprio 2\ns_waitcnt lgkmcnt(0)")
    stamp(1)
    srd(36, 6, 0x2000000)
    bulk(0, pre_k)
    a("s_barrier")
    bulk(pre_k, 32)
    stamp(2)
    srd(40, 26, 0x10000000)
    a(f"v_mov_b32 v8, 0\nv_and_b32 v9, 15, v2\nv_lshlrev_b32 v9, 4, v9\ns_mov_b32 s35, {SPIN*8}")
    a(f"""L_qf:
    ds_read_b32 v10, v8 offset:{L_FLAG}
    s_waitcnt lgkmcnt(0)
    v_readfirstlane_b32 s3, v10
    s_cmp_lg_u32 s3, 0
    s_cbranch_scc1 L_qf_done
    s_sleep 2""")
    spin_tail("L_qf")
    a(f"L_qf_done:\nds_read_b128 v[4:7], v9 offset:{L_Q}\ns_waitcnt lgkmcnt(0)")
    stamp(3)
    for grp in range(4):
        a(f"s_waitcnt vmcnt({24-8*grp})")
        for k in range(4):
            for t in range(8 * grp, 8 * grp + 8):
                if k == 0: a(f"v_dot2_f32_bf16 v{64+t}, v{128+4*t}, v4, 0")
                else: a(f"v_dot2_f32_bf16 v{64+t}, v{128+4*t+k}, v{4+k}, v{64+t}")
    stamp(4)
    a("s_nop 1")
    for t in range(16):
        a(f"v_add_f32_dpp v{64+t}, v{64+t}, v{64+t} row_shl:8 row_mask:0xf bank_mask:0x3")
    for t in range(16):
        a(f"v_add_f32_dpp v{64+t}, v{80+t}, v{80+t} row_shr:8 row_mask:0xf bank_mask:0xc")
    for t in range(8):
        a(f"v_add_f32_dpp v{64+t}, v{64+t}, v{64+t} row_shl:4 row_mask:0xf bank_mask:0x5")
    for t in range(8):
        a(f"v_add_f32_dpp v{64+t}, v{72+t}, v{72+t} row_shr:4 row_mask:0xf bank_mask:0xa")
    a("v_and_b32 v8, 2, v2\nv_cmp_ne_u32 vcc, 0, v8")
    for t in range(8):
        a(f"v_add_f32_dpp v{64+t}, v{64+t}, v{64+t} quad_perm:[2,3,0,1] row_mask:0xf bank_mask:0xf")
    for t in range(4): a(f"v_cndmask_b32 v{64+t}, v{64+t}, v{68+t}, vcc")
    a("v_and_b32 v8, 1, v2\nv_cmp_ne_u32 vcc, 0, v8")
    for t in range(4):
        a(f"v_add_f32_dpp v{64+t}, v{64+t}, v{64+t} quad_perm:[1,0,3,2] row_mask:0xf bank_mask:0xf")
    for t in range(2): a(f"v_cndmask_b32 v{64+t}, v{64+t}, v{66+t}, vcc")
    a(f"""v_cvt_pk_bf16_f32 v8, v64, v65
    v_lshlrev_b32 v64, 16, v8
    v_and_b32 v65, 0xffff0000, v8
    v_mul_f32 v64, 0x3db504f3, v64
    v_mul_f32 v65, 0x3db504f3, v65
    v_cvt_pk_bf16_f32 v8, v64, v65
    v_lshlrev_b32 v64, 16, v8
    v_and_b32 v65, 0xffff0000, v8
    v_max_f32 v10, v64, v65""")
    allred64("v_max_f32", 10, 11)
    a(f"""v_sub_f32 v64, v64, v10
    v_sub_f32 v65, v65, v10
    v_mul_f32 v64, {LOG2E}, v64
    v_mul_f32 v65, {LOG2E}, v65
    v_exp_f32 v64, v64
    v_exp_f32 v65, v65
    s_lshl_b32 s3, s32, 8
    v_lshl_add_u32 v9, v2, 2, s3
    v_cvt_pk_bf16_f32 v8, v64, v65
    v_add_f32 v11, v64, v65
    ds_write_b32 v9, v8 offset:{L_P}""")
    allred64("v_add_f32", 11, 12)
    a(f"""s_lshl_b32 s3, s32, 3
    v_mov_b32 v9, s3
    s_mov_b64 exec, 1
    buffer_store_dwordx2 v[10:11], v9, s[40:43], s45 offen offset:{ML} sc1
    s_mov_b64 exec, -1
    s_waitcnt lgkmcnt(0)""")
    stamp(5)
    a(f"""v_lshrrev_b32 v8, 3, v2
    v_and_b32 v9, 7, v2
    s_lshl_b32 s3, s29, 7
    s_lshl_b32 s34, s32, 5
    s_add_u32 s3, s3, s34
    v_lshl_add_u32 v16, v8, 2, s3
    v_lshlrev_b32 v16, 10, v16
    s_lshl_b32 s46, s30, 7
    v_lshl_add_u32 v12, v9, 4, s46
    v_add_u32 v16, v16, v12
    s_mul_i32 s3, s29, 48
    s_mul_i32 s47, s32, 12
    s_add_u32 s3, s3, s47
    v_lshl_add_u32 v17, v8, 1, s3
    v_lshlrev_b32 v17, 10, v17
    v_add_u32 v17, v17, v12
    v_cmp_gt_u32 vcc, 48, v2
    v_mov_b32 v12, 0x40000000
    v_lshlrev_b32 v19, 12, v9
    v_cndmask_b32 v17, v12, v17, vcc
    v_lshl_add_u32 v18, v8, 1, s47
    v_lshl_add_u32 v18, v18, 2, v19
    v_lshl_add_u32 v20, v8, 2, s34
    v_lshl_add_u32 v20, v20, 2, v19""")
    srd(48, 12, 0x400000)
    srd(52, 20, 1376 * 1024)
    a(f"""v_and_b32 v8, 1, v2
    v_mov_b32 v9, 0xffff
    v_mov_b32 v10, 0xffff0000
    v_cmp_eq_u32 vcc, 1, v8
    v_bfe_u32 v8, v2, 1, 2
    s_nop 0
    v_cndmask_b32 v9, v9, v10, vcc""")
    for r in range(4):
        a(f"v_cmp_eq_u32 vcc, {r}, v8\ns_nop 1\nv_cndmask_b32 v{32+r}, 0, v9, vcc")
    a("s_barrier")
    stamp(6)
    for u in range(4): a(f"buffer_load_dwordx4 v[{128+4*u}:{131+4*u}], v16, s[48:51], 0 offen offset:{1024*u} {wflag}")
    for u in range(2): a(f"buffer_load_dwordx4 v[{144+4*u}:{147+4*u}], v17, s[52:55], 0 offen offset:{1024*u} {wflag}")
    a(f"""s_mov_b32 s35, {SPIN}
    L_gu:
    buffer_load_dwordx2 v[24:25], v18, s[40:43], s44 offen offset:{GU} sc1
    buffer_load_dwordx2 v[26:27], v18, s[40:43], s44 offen offset:{GU+256} sc1
    buffer_load_dwordx4 v[56:59], v19, s[40:43], s44 offen offset:{ML} sc1
    buffer_load_dwordx4 v[60:63], v19, s[40:43], s44 offen offset:{ML+16} sc1
    s_waitcnt vmcnt(0)
    v_max_f32 v8, v56, v58
    v_max3_f32 v8, v8, v60, v62""")
    allred8("v_add_f32", [24, 25, 26, 27])
    a("s_nop 0")
    allred8("v_max_f32", [8])
    for k in range(4):
        a(f"v_sub_f32 v{56+2*k}, v{56+2*k}, v8\nv_mul_f32 v{56+2*k}, {LOG2E}, v{56+2*k}\nv_exp_f32 v{56+2*k}, v{56+2*k}")
    a("""s_nop 0
    v_mul_f32 v8, v56, v57
    v_fmac_f32 v8, v58, v59
    v_fmac_f32 v8, v60, v61
    v_fmac_f32 v8, v62, v63""")
    allred8("v_add_f32", [8])
    a("""v_add_f32 v9, v24, v25
    v_add_f32 v10, v26, v27
    v_add_f32 v9, v9, v10
    v_cmp_u_f32 vcc, v8, v9
    s_cbranch_vccz L_gu_done""")
    spin_tail("L_gu")
    a("L_gu_done:")
    stamp(7)
    a("v_rcp_f32 v8, v8\ns_nop 0")
    for k in range(4): a(f"v_mul_f32 v{56+k}, v{56+2*k}, v8")
    a(f"""v_cvt_pk_bf16_f32 v8, v24, v25
    v_cvt_pk_bf16_f32 v9, v26, v27
    v_lshlrev_b32 v24, 16, v8
    v_and_b32 v25, 0xffff0000, v8
    v_lshlrev_b32 v26, 16, v9
    v_and_b32 v27, 0xffff0000, v9
    s_mov_b32 s3, 0x3d372713
    v_mul_f32 v8, v24, v24
    v_mul_f32 v9, v25, v25
    v_fma_f32 v8, v8, s3, 1.0
    v_fma_f32 v9, v9, s3, 1.0
    v_mul_f32 v8, v8, v24
    v_mul_f32 v9, v9, v25
    v_mul_f32 v8, 0xc0135761, v8
    v_mul_f32 v9, 0xc0135761, v9
    v_exp_f32 v8, v8
    v_exp_f32 v9, v9
    s_nop 0
    v_add_f32 v8, 1.0, v8
    v_add_f32 v9, 1.0, v9
    v_rcp_f32 v8, v8
    v_rcp_f32 v9, v9
    s_nop 0
    v_mul_f32 v8, v8, v24
    v_mul_f32 v9, v9, v25
    v_cvt_pk_bf16_f32 v8, v8, v9
    v_lshlrev_b32 v24, 16, v8
    v_and_b32 v25, 0xffff0000, v8
    v_mul_f32 v24, v24, v26
    v_mul_f32 v25, v25, v27
    v_cvt_pk_bf16_f32 v24, v24, v24
    v_cvt_pk_bf16_f32 v25, v25, v25""")
    for u in range(2):
        for r in range(4): a(f"v_and_b32 v{40+4*u+r}, v{24+u}, v{32+r}")
    a("""s_nop 1
    v_mfma_f32_16x16x32_bf16 v[48:51], v[40:43], v[144:147], 0
    v_mfma_f32_16x16x32_bf16 v[48:51], v[44:47], v[148:151], v[48:51]""")
    a(f"""v_lshrrev_b32 v8, 5, v2
    s_lshl_b32 s3, s32, 9
    v_lshl_add_u32 v8, v8, 8, s3
    v_and_b32 v9, 7, v2
    v_lshl_add_u32 v8, v9, 5, v8
    v_and_b32 v9, 16, v2
    v_add_u32 v21, v8, v9
    v_lshlrev_b32 v22, 2, v2
    s_mov_b32 s56, 0x00ff00ff
    s_mov_b32 s57, 0xff00ff00
    s_mov_b32 s35, {SPIN}""")
    stamp(8)
    a("L_op:")
    for k in range(4): a(f"buffer_load_dwordx4 v[{64+4*k}:{67+4*k}], v20, s[40:43], s44 offen offset:{OP+512*k} sc1")
    a("s_waitcnt vmcnt(3)")
    for u in range(4): a(f"v_mul_f32 v{24+u}, v{64+u}, v56")
    for k in range(1, 4):
        a(f"s_waitcnt vmcnt({3-k})")
        for u in range(4): a(f"v_fmac_f32 v{24+u}, v{64+4*k+u}, v{56+k}")
    allred8("v_add_f32", [24, 25, 26, 27])
    a("""v_cmp_u_f32 vcc, v24, v25
    v_cmp_u_f32 s[58:59], v26, v27
    s_or_b64 vcc, vcc, s[58:59]
    s_cbranch_vccz L_op_done""")
    spin_tail("L_op")
    a("L_op_done:")
    stamp(9)
    for u in range(4): a(f"v_cvt_pk_bf16_f32 v{24+u}, v{24+u}, v{24+u}")
    for u in range(4):
        for r in range(4): a(f"v_and_b32 v{64+4*u+r}, v{24+u}, v{32+r}")
    for u in range(4): a(f"v_mfma_f32_16x16x32_bf16 v[48:51], v[{64+4*u}:{67+4*u}], v[{128+4*u}:{131+4*u}], v[48:51]")
    a(f"""s_mov_b64 exec, s[56:57]
    s_nop 6
    ds_write_b128 v21, v[48:51] offset:{L_Y}
    s_mov_b64 exec, -1
    s_waitcnt lgkmcnt(0)
    s_barrier""")
    stamp(10)
    a("s_cmp_eq_u32 s32, 1\ns_cbranch_scc1 L_fin\ns_cmp_lg_u32 s32, 0\ns_cbranch_scc1 L_K_end")
    for k in range(4): a(f"ds_read2st64_b32 v[{8+2*k}:{9+2*k}], v22 offset0:{L_Y//256+2*k} offset1:{L_Y//256+2*k+1}")
    a(f"""s_waitcnt lgkmcnt(2)
    v_add_f32 v8, v8, v9
    v_add_f32 v10, v10, v11
    s_waitcnt lgkmcnt(0)
    v_add_f32 v12, v12, v13
    v_add_f32 v14, v14, v15
    v_add_f32 v8, v8, v10
    v_add_f32 v12, v12, v14
    v_add_f32 v8, v8, v12
    buffer_store_dword v8, v22, s[40:43], s45 offen offset:{YP} sc1""")
    stamp(11)
    a("L_K_end:")
    write_stamps()
    a("s_endpgm")
    a(f"""L_fin:
    s_lshl_b32 s3, s30, 2
    s_cmp_lg_u32 s3, s29
    s_cbranch_scc1 L_K_end
    v_lshrrev_b32 v8, 4, v2
    v_and_b32 v9, 15, v2
    v_lshlrev_b32 v10, 15, v8
    v_lshl_add_u32 v10, v9, 4, v10
    s_lshl_b32 s46, s30, 12
    v_lshrrev_b32 v11, 1, v8
    v_and_b32 v8, 1, v8
    v_lshl_add_u32 v11, v8, 1, v11
    v_lshl_add_u32 v11, v9, 2, v11
    s_lshl_b32 s3, s30, 6
    v_add_u32 v11, s3, v11
    v_lshlrev_b32 v11, 1, v11
    global_load_ushort v12, v11, s[4:5]
    v_and_b32 v8, 8, v2
    v_cmp_eq_u32 s[58:59], 0, v8
    s_mov_b32 s35, {SPIN}
    L_all:
    global_load_dword v13, v22, s[24:25] sc1
    s_waitcnt vmcnt(0)
    v_cmp_ne_u32 vcc, 8, v13
    s_and_b64 vcc, vcc, s[58:59]
    s_cbranch_vccz L_all_done""")
    spin_tail("L_all")
    a(f"L_all_done:\nv_lshlrev_b32 v12, 16, v12\ns_mov_b32 s35, {SPIN}\nL_yp:")
    for u in range(8):
        a(f"s_add_u32 s34, s46, {u*4*8*REC}\nbuffer_load_dwordx4 v[{64+4*u}:{67+4*u}], v10, s[40:43], s34 offen offset:{YP} sc1")
    for u in range(0, 8, 2):
        a(f"s_waitcnt vmcnt({6-u})")
        for k in range(4): a(f"v_add_f32 v{64+4*u+k}, v{64+4*u+k}, v{68+4*u+k}")
        if u % 4 == 2:
            for k in range(4): a(f"v_add_f32 v{56+4*u+k}, v{56+4*u+k}, v{64+4*u+k}")
    for k in range(4): a(f"v_add_f32 v{64+k}, v{64+k}, v{80+k}")
    a("""s_nop 0
    v_permlane32_swap_b32 v64, v65
    v_permlane32_swap_b32 v66, v67
    v_add_f32 v64, v64, v65
    v_add_f32 v66, v66, v67
    s_nop 1
    v_permlane16_swap_b32 v64, v66
    v_add_f32 v64, v64, v66
    v_cmp_u_f32 vcc, v64, v64
    s_cbranch_vccz L_yp_done""")
    spin_tail("L_yp")
    a("""L_yp_done:
    v_add_f32 v64, v64, v12
    v_cvt_pk_bf16_f32 v64, v64, v64
    global_store_short v11, v64, s[22:23]""")
    stamp(12)
    write_stamps()
    a("L_end:\ns_endpgm")
    bad = lint(a.L)
    for b in bad: print("HAZARD need %d have %d:\n   %s\n   %s" % (b[2], b[3], b[0], b[1]), file=sys.stderr)
    return a.text() + footer()

if __name__ == "__main__":
    open("v1.s", "w").write(gen())
    open("v1_st.s", "w").write(gen(stamps=True))
```

```python
import sys
from asmlib import *

REC = 4096
QP, GU, OP, YP, ML = 0, 512, 1024, 3072, 3328
L_XN, L_Q, L_FLAG, L_P, L_Y = 0, 1024, 1280, 2048, 4096
LDS = 6144
SPIN = 20000
LOG2E = 0x3fb8aa3b

def gen(stamps=False, kvflag="nt", wflag="nt", WK=6, WV=6, vfree=8, gate_at=29, diag=False):
    a = Asm()
    st = {"n": 0}
    def stamp(j):
        if stamps: a(f"s_memrealtime s[{64+2*j}:{65+2*j}]")
    def srd(d, b, n):
        a(f"s_mov_b32 s{d}, s{b}\ns_mov_b32 s{d+1}, s{b+1}\ns_mov_b32 s{d+2}, {n}\ns_mov_b32 s{d+3}, 0x20000")
    def allred16(op, r):
        for k in (8, 4, 2, 1):
            a(f"s_nop 1\n{op}_dpp v{r}, v{r}, v{r} row_ror:{k} row_mask:0xf bank_mask:0xf")
    def allred64(op, r, t):
        allred16(op, r)
        for sw in ("v_permlane16_swap_b32", "v_permlane32_swap_b32"):
            a(f"v_mov_b32 v{t}, v{r}\ns_nop 1\n{sw} v{r}, v{t}\n{op} v{r}, v{r}, v{t}")
    def allred8(op, rs):
        for m in ("quad_perm:[1,0,3,2]", "quad_perm:[2,3,0,1]", "row_half_mirror"):
            if len(rs) < 3: a(f"s_nop {2-len(rs)}")
            for r in rs: a(f"{op}_dpp v{r}, v{r}, v{r} {m} row_mask:0xf bank_mask:0xf")
    def bulk(t0, t1, W, free=0, sig=-1):
        for t in range(t0, t1):
            if t % 4 == 0: a(f"s_add_u32 s34, s33, {t*1024}")
            if W and t >= W and t < 32 - free: a(f"s_waitcnt vmcnt({W-1})")
            if t == sig + 1 and sig >= 0: a(f"s_mov_b64 exec, 1\nds_add_u32 v8, v9 offset:{L_FLAG+8}\ns_mov_b64 exec, -1")
            a(f"buffer_load_dwordx4 v[{128+4*t}:{131+4*t}], v3, s[36:39], s34 offen offset:{(t%4)*1024} {kvflag}")
    def spin_tail(lbl):
        a(f"s_sub_u32 s35, s35, 1\ns_cmp_lg_u32 s35, 0\ns_cbranch_scc1 {lbl}")
    def dstamp(j, inv=False):
        if not diag: return
        a(f"s_memrealtime s[60:61]\ns_waitcnt lgkmcnt(0)")
        if inv: a("s_not_b32 s60, s62")
        a(f"s_mov_b64 s[62:63], exec\ns_mov_b64 exec, 1\nv_mov_b32 v126, s60\nv_mov_b32 v127, {4*j}\nglobal_atomic_umax v127, v126, s[24:25] sc1\ns_mov_b64 exec, s[62:63]")
    def write_stamps():
        if not stamps: return
        a("s_waitcnt lgkmcnt(0)\ns_mov_b64 exec, 1")
        a(f"s_lshl_b32 s34, s2, 3\ns_add_u32 s34, s34, s31\ns_lshl_b32 s34, s34, 7\ns_add_u32 s34, s34, {128<<20}\nv_mov_b32 v2, s34")
        for j in range(16):
            a(f"v_mov_b32 v4, s{64+2*j}\nv_mov_b32 v5, s{65+2*j}\nbuffer_store_dwordx2 v[4:5], v2, s[40:43], 0 offen offset:{8*j}")

    a(f"; @launch grid=(256,1,1) block=(512,1,1) lds={LDS}")
    a('.amdgcn_target "amdgcn-amd-amdhsa--gfx950"\n.text')
    a(f".globl {KN}\n.p2align 8\n.type {KN},@function\n{KN}:")
    if stamps:
        for j in range(1, 16): a(f"s_mov_b64 s[{64+2*j}:{65+2*j}], 0")
    stamp(0)
    if diag: a("s_memrealtime s[62:63]")
    a("""s_load_dwordx16 s[4:19], s[0:1], 0
    s_load_dwordx8 s[20:27], s[0:1], 64
    s_cmp_ge_u32 s2, 256
    s_cbranch_scc1 L_end
    v_lshrrev_b32 v1, 6, v0
    v_and_b32 v2, 63, v0
    s_and_b32 s3, s2, 7
    v_readfirstlane_b32 s31, v1
    s_lshr_b32 s28, s2, 3
    s_lshl_b32 s3, s3, 2
    s_and_b32 s29, s28, 3
    s_or_b32 s29, s29, s3
    s_lshr_b32 s30, s28, 2
    v_lshlrev_b32 v3, 4, v2
    s_and_b32 s32, s31, 3
    s_lshl_b32 s33, s29, 20
    s_lshl_b32 s3, s30, 17
    s_add_u32 s33, s33, s3
    s_lshl_b32 s3, s32, 15
    s_add_u32 s33, s33, s3
    s_lshl_b32 s44, s29, 3
    s_add_u32 s45, s44, s30
    s_lshl_b32 s44, s44, 12
    s_lshl_b32 s45, s45, 12
    s_cmp_ge_u32 s31, 4
    s_cbranch_scc1 L_K""")
    a("s_cmp_lg_u32 s31, 0\ns_cbranch_scc1 L_V_other")
    a("""v_lshrrev_b32 v8, 4, v2
    v_and_b32 v9, 15, v2
    s_lshl_b32 s3, s30, 6
    v_lshl_add_u32 v10, v8, 4, s3
    v_lshlrev_b32 v11, 13, v10
    v_lshl_add_u32 v11, v9, 4, v11
    s_lshl_b32 s46, s29, 8
    v_and_b32 v12, 7, v9
    s_mul_i32 s3, s29, 6
    v_add_u32 v12, s3, v12
    v_min_u32 v12, 171, v12
    v_mul_u32_u24 v13, 2752, v10
    v_lshl_add_u32 v12, v12, 4, v13
    v_add_u32 v12, 2752, v12
    v_mov_b32 v13, 0
    v_cmp_lt_u32 vcc, 7, v9
    v_mov_b32 v28, 0
    v_mov_b32 v29, 0
    v_mov_b32 v30, 0
    s_waitcnt lgkmcnt(0)""")
    stamp(1)
    a("global_load_dwordx4 v[4:7], v3, s[4:5]")
    srd(48, 10, 0x400000)
    for t in range(16):
        a(f"s_add_u32 s34, s46, {t*8192}")
        a(f"buffer_load_dwordx4 v[{128+4*t}:{131+4*t}], v11, s[48:51], s34 offen {wflag}")
    a("""v_mov_b32 v14, s16
    v_mov_b32 v15, s17
    v_mov_b32 v16, s18
    v_mov_b32 v17, s19
    v_cndmask_b32 v14, v14, v16, vcc
    v_cndmask_b32 v15, v15, v17, vcc
    v_lshl_add_u64 v[14:15], v[12:13], 0, v[14:15]
    s_mov_b64 s[52:53], 8256""")
    for t in range(16):
        if t % 3 == 0 and t: a("v_lshl_add_u64 v[14:15], v[14:15], 0, s[52:53]")
        a(f"global_load_dwordx4 v[{192+4*t}:{195+4*t}], v[14:15], off offset:{(t%3-1)*2752} {wflag}")
    a(f"ds_write_b96 v28, v[28:30] offset:{L_FLAG}\ns_waitcnt lgkmcnt(0)\ns_barrier")
    stamp(2)
    srd(40, 26, 0x10000000)
    def cntaddr():
        a("""s_and_b32 s3, s29, 3
        s_lshl_b32 s3, s3, 4
        s_lshr_b32 s34, s29, 2
        s_add_u32 s3, s3, s34
        s_lshl_b32 s3, s3, 2
        v_mov_b32 v29, s3
        v_mov_b32 v30, 1""")
    cntaddr()
    def selectors():
        a("""v_and_b32 v8, 1, v2
        v_mov_b32 v9, 0x0c0c0100
        v_mov_b32 v10, 0x01000c0c
        v_cmp_eq_u32 vcc, 1, v8
        v_mov_b32 v11, 0x0c0c0302
        v_mov_b32 v12, 0x03020c0c
        v_cndmask_b32 v9, v9, v10, vcc
        v_cndmask_b32 v11, v11, v12, vcc
        v_bfe_u32 v8, v2, 1, 3
        v_mov_b32 v10, 0x0c0c0c0c""")
        for r in range(4):
            a(f"v_cmp_eq_u32 vcc, {r}, v8\ns_nop 1\nv_cndmask_b32 v{32+2*r}, v10, v9, vcc\nv_cndmask_b32 v{33+2*r}, v10, v11, vcc")
    selectors()
    a("s_waitcnt vmcnt(32)")
    stamp(4)
    for k in range(4):
        a(f"v_lshlrev_b32 v{8+2*k}, 16, v{4+k}\nv_and_b32 v{9+2*k}, 0xffff0000, v{4+k}")
    a("""v_add_f32 v16, v8, v9
    v_add_f32 v17, v10, v11
    v_add_f32 v18, v12, v13
    v_add_f32 v19, v14, v15
    v_add_f32 v16, v16, v17
    v_add_f32 v18, v18, v19
    v_add_f32 v16, v16, v18""")
    allred64("v_add_f32", 16, 17)
    a("v_mul_f32 v16, 0x3b000000, v16")
    a("v_sub_f32 v18, v8, v16\nv_mul_f32 v17, v18, v18")
    for k in range(1, 8): a(f"v_sub_f32 v18, v{8+k}, v16\nv_fmac_f32 v17, v18, v18")
    allred64("v_add_f32", 17, 18)
    a("""v_mul_f32 v17, 0x3b000000, v17
    v_cvt_pk_bf16_f32 v16, v16, v17
    v_and_b32 v17, 0xffff0000, v16
    v_lshlrev_b32 v16, 16, v16
    v_add_f32 v17, 0x3727c5ac, v17
    v_cvt_pk_bf16_f32 v17, v17, v17
    v_and_b32 v17, 0xffff0000, v17
    v_sqrt_f32 v17, v17
    s_nop 0
    v_cvt_pk_bf16_f32 v17, v17, v17
    v_and_b32 v17, 0xffff0000, v17
    v_rcp_f32 v18, v17""")
    for k in range(4):
        lo, hi = 8 + 2 * k, 9 + 2 * k
        a(f"""v_sub_f32 v{lo}, v{lo}, v16
        v_sub_f32 v{hi}, v{hi}, v16
        v_cvt_pk_bf16_f32 v19, v{lo}, v{hi}
        v_lshlrev_b32 v{lo}, 16, v19
        v_and_b32 v{hi}, 0xffff0000, v19
        v_mul_f32 v19, v{lo}, v18
        v_mul_f32 v20, v{hi}, v18
        v_fma_f32 v{lo}, -v19, v17, v{lo}
        v_fma_f32 v{hi}, -v20, v17, v{hi}
        v_fma_f32 v19, v{lo}, v18, v19
        v_fma_f32 v20, v{hi}, v18, v20
        v_cvt_pk_bf16_f32 v{4+k}, v19, v20""")
    a(f"""ds_write_b128 v3, v[4:7] offset:{L_XN}
    v_lshrrev_b32 v8, 4, v2
    s_lshl_b32 s3, s30, 7
    v_lshl_add_u32 v8, v8, 5, s3
    s_waitcnt lgkmcnt(0)
    ds_read_b128 v[16:19], v8 offset:{L_XN}
    ds_read_b128 v[20:23], v8 offset:{L_XN+16}
    v_and_b32 v9, 15, v2
    v_lshlrev_b32 v9, 5, v9
    v_and_b32 v10, 16, v2
    v_add_u32 v31, v9, v10
    global_load_dword v28, v29, s[24:25] sc1
    s_waitcnt lgkmcnt(0)""")
    stamp(5)
    for t in range(16):
        A = 40 + 4 * (t & 1)
        for r in range(4): a(f"v_perm_b32 v{A+r}, v{16+t//2}, v{16+t//2}, v{32+2*r+(t&1)}")
        if t == 0: a("s_nop 0\ns_waitcnt vmcnt(17)")
        else: a("s_nop 1")
        a(f"v_mfma_f32_16x16x32_bf16 v[48:51], v[{A}:{A+3}], v[{128+4*t}:{131+4*t}], {'0' if t == 0 else 'v[48:51]'}")
    a(f"""v_mov_b32 v10, 0
    s_mov_b32 s35, {SPIN*8}
    L_clr:
    ds_read_b32 v9, v10 offset:{L_FLAG+4}
    s_waitcnt lgkmcnt(0)
    v_readfirstlane_b32 s3, v9
    s_cmp_lg_u32 s3, 0
    s_cbranch_scc1 L_clr_done""")
    spin_tail("L_clr")
    a(f"L_clr_done:\ns_mov_b32 exec_hi, 0\ns_nop 4\nbuffer_store_dwordx4 v[48:51], v31, s[40:43], s45 offen offset:{QP} sc1\ns_mov_b32 exec_hi, -1")
    stamp(6)
    for t in range(16):
        A = 40 + 4 * (t & 1)
        for r in range(4): a(f"v_perm_b32 v{A+r}, v{16+t//2}, v{16+t//2}, v{32+2*r+(t&1)}")
        if t == 0: a("s_nop 0\ns_waitcnt vmcnt(2)")
        else: a("s_nop 1")
        a(f"v_mfma_f32_16x16x32_bf16 v[52:55], v[{A}:{A+3}], v[{192+4*t}:{195+4*t}], {'0' if t == 0 else 'v[52:55]'}")
    a(f"s_mov_b32 exec_hi, 0\ns_nop 6\nbuffer_store_dwordx4 v[52:55], v31, s[40:43], s45 offen offset:{GU} sc1\ns_mov_b32 exec_hi, -1")
    a(f"""s_mov_b32 s35, {SPIN}
    s_waitcnt vmcnt(2)
    L_cnt:
    v_readfirstlane_b32 s3, v28
    s_cmp_eq_u32 s3, 8
    s_cbranch_scc1 L_cnt_done
    global_load_dword v28, v29, s[24:25] sc1
    s_waitcnt vmcnt(0)""")
    spin_tail("L_cnt")
    a("L_cnt_done:")
    stamp(7)
    a(f"""v_lshrrev_b32 v8, 5, v2
    v_and_b32 v9, 31, v2
    v_lshlrev_b32 v8, 12, v8
    v_lshl_add_u32 v8, v9, 4, v8
    v_lshlrev_b32 v9, 3, v9
    s_mov_b32 s35, {SPIN}
    L_qp:""")
    for u in range(4):
        a(f"s_add_u32 s34, s44, {u*2*REC}\nbuffer_load_dwordx4 v[{56+4*u}:{59+4*u}], v8, s[40:43], s34 offen offset:{QP} sc1")
    a("s_waitcnt vmcnt(0)")
    for k in range(4): a(f"v_add_f32 v{56+k}, v{56+k}, v{60+k}\nv_add_f32 v{64+k}, v{64+k}, v{68+k}")
    for k in range(4): a(f"v_add_f32 v{56+k}, v{56+k}, v{64+k}")
    for k in range(4): a(f"v_mov_b32 v{60+k}, v{56+k}")
    a("s_nop 1")
    for k in range(4): a(f"v_permlane32_swap_b32 v{56+k}, v{60+k}")
    for k in range(4): a(f"v_add_f32 v{56+k}, v{56+k}, v{60+k}")
    a("""v_cmp_u_f32 vcc, v56, v57
    v_cmp_u_f32 s[52:53], v58, v59
    s_or_b64 vcc, vcc, s[52:53]
    s_cbranch_vccz L_qp_done""")
    spin_tail("L_qp")
    a(f"""L_qp_done:
    v_cvt_pk_bf16_f32 v56, v56, v57
    v_cvt_pk_bf16_f32 v57, v58, v59
    v_mov_b32 v10, 0
    ds_write_b64 v9, v[56:57] offset:{L_Q}
    s_waitcnt lgkmcnt(0)
    ds_write_b32 v10, v30 offset:{L_FLAG}""")
    stamp(8)
    a("s_branch L_V_load")
    a("""L_V_other:
    v_mov_b32 v24, -1
    v_mov_b32 v25, -1
    v_mov_b32 v26, -1
    v_mov_b32 v27, -1
    s_waitcnt lgkmcnt(0)""")
    srd(40, 26, 0x10000000)
    a("s_cmp_lg_u32 s31, 1\ns_cbranch_scc1 L_V_idle")
    for k in range(4):
        a(f"buffer_store_dwordx4 v[24:27], v3, s[40:43], s45 offen offset:{1024*k} sc1")
    a("s_barrier")
    cntaddr()
    a(f"""v_mov_b32 v10, 0
    s_mov_b64 exec, 1
    s_waitcnt vmcnt(0)
    global_atomic_add v29, v30, s[24:25] sc1
    ds_write_b32 v10, v30 offset:{L_FLAG+4}
    s_mov_b64 exec, -1""")
    stamp(3)
    a("s_branch L_V_sel\nL_V_idle:\ns_barrier\nL_V_sel:")
    selectors()
    a("""v_and_b32 v9, 15, v2
    v_lshlrev_b32 v9, 5, v9
    v_and_b32 v10, 16, v2
    v_add_u32 v31, v9, v10""")
    a("L_V_load:")
    srd(36, 8, 0x2000000)
    a(f"""v_mov_b32 v8, 0
    s_mov_b32 s35, {SPIN*8}
    L_gate:
    ds_read_b32 v10, v8 offset:{L_FLAG+8}
    s_waitcnt lgkmcnt(0)
    v_readfirstlane_b32 s3, v10
    s_cmp_ge_u32 s3, 4
    s_cbranch_scc1 L_gate_done
    s_sleep 1""")
    spin_tail("L_gate")
    a("L_gate_done:")
    stamp(12)
    bulk(0, 32, WV, vfree)
    stamp(9)
    a(f"""v_lshrrev_b32 v8, 4, v2
    s_lshl_b32 s3, s32, 8
    v_lshl_add_u32 v8, v8, 6, s3
    s_lshl_b32 s3, s32, 9
    s_add_u32 s46, s45, s3
    s_barrier""")
    stamp(10)
    for k in range(4): a(f"ds_read_b128 v[{56+4*k}:{59+4*k}], v8 offset:{L_P+16*k}")
    a("s_waitcnt lgkmcnt(0)")
    for t in range(32):
        A = 40 + 4 * (t & 1)
        for r in range(4): a(f"v_perm_b32 v{A+r}, v{56+t//2}, v{56+t//2}, v{32+2*r+(t&1)}")
        a(f"s_nop 0\ns_waitcnt vmcnt({31-t})")
        a(f"v_mfma_f32_16x16x32_bf16 v[48:51], v[{A}:{A+3}], v[{128+4*t}:{131+4*t}], {'0' if t == 0 else 'v[48:51]'}")
    stamp(11)
    a(f"s_mov_b32 exec_hi, 0\ns_nop 6\nbuffer_store_dwordx4 v[48:51], v31, s[40:43], s46 offen offset:{OP} sc1")
    dstamp(8, True)
    dstamp(10)
    write_stamps()
    a("s_endpgm")
    a("L_K:\nv_mov_b32 v8, 0\nv_mov_b32 v9, 1\ns_waitcnt lgkmcnt(0)")
    stamp(1)
    srd(36, 6, 0x2000000)
    pre_k = WK if WK else 8
    bulk(0, pre_k, WK)
    a("s_barrier")
    bulk(pre_k, 32, WK, 0, gate_at)
    stamp(2)
    srd(40, 26, 0x10000000)
    a(f"v_mov_b32 v8, 0\nv_and_b32 v9, 15, v2\nv_lshlrev_b32 v9, 4, v9\ns_mov_b32 s35, {SPIN*8}")
    a(f"""L_qf:
    ds_read_b32 v10, v8 offset:{L_FLAG}
    s_waitcnt lgkmcnt(0)
    v_readfirstlane_b32 s3, v10
    s_cmp_lg_u32 s3, 0
    s_cbranch_scc1 L_qf_done
    s_sleep 2""")
    spin_tail("L_qf")
    a(f"L_qf_done:\nds_read_b128 v[4:7], v9 offset:{L_Q}\ns_waitcnt lgkmcnt(0)")
    stamp(3)
    for grp in range(4):
        a(f"s_waitcnt vmcnt({24-8*grp})")
        for k in range(4):
            for t in range(8 * grp, 8 * grp + 8):
                if k == 0: a(f"v_dot2_f32_bf16 v{64+t}, v{128+4*t}, v4, 0")
                else: a(f"v_dot2_f32_bf16 v{64+t}, v{128+4*t+k}, v{4+k}, v{64+t}")
    stamp(4)
    a("s_nop 1")
    for t in range(16):
        a(f"v_add_f32_dpp v{64+t}, v{64+t}, v{64+t} row_shl:8 row_mask:0xf bank_mask:0x3")
    for t in range(16):
        a(f"v_add_f32_dpp v{64+t}, v{80+t}, v{80+t} row_shr:8 row_mask:0xf bank_mask:0xc")
    for t in range(8):
        a(f"v_add_f32_dpp v{64+t}, v{64+t}, v{64+t} row_shl:4 row_mask:0xf bank_mask:0x5")
    for t in range(8):
        a(f"v_add_f32_dpp v{64+t}, v{72+t}, v{72+t} row_shr:4 row_mask:0xf bank_mask:0xa")
    a("v_and_b32 v8, 2, v2\nv_cmp_ne_u32 vcc, 0, v8")
    for t in range(8):
        a(f"v_add_f32_dpp v{64+t}, v{64+t}, v{64+t} quad_perm:[2,3,0,1] row_mask:0xf bank_mask:0xf")
    for t in range(4): a(f"v_cndmask_b32 v{64+t}, v{64+t}, v{68+t}, vcc")
    a("v_and_b32 v8, 1, v2\nv_cmp_ne_u32 vcc, 0, v8")
    for t in range(4):
        a(f"v_add_f32_dpp v{64+t}, v{64+t}, v{64+t} quad_perm:[1,0,3,2] row_mask:0xf bank_mask:0xf")
    for t in range(2): a(f"v_cndmask_b32 v{64+t}, v{64+t}, v{66+t}, vcc")
    a(f"""v_cvt_pk_bf16_f32 v8, v64, v65
    v_lshlrev_b32 v64, 16, v8
    v_and_b32 v65, 0xffff0000, v8
    v_mul_f32 v64, 0x3db504f3, v64
    v_mul_f32 v65, 0x3db504f3, v65
    v_cvt_pk_bf16_f32 v8, v64, v65
    v_lshlrev_b32 v64, 16, v8
    v_and_b32 v65, 0xffff0000, v8
    v_max_f32 v10, v64, v65""")
    allred64("v_max_f32", 10, 11)
    a(f"""v_sub_f32 v64, v64, v10
    v_sub_f32 v65, v65, v10
    v_mul_f32 v64, {LOG2E}, v64
    v_mul_f32 v65, {LOG2E}, v65
    v_exp_f32 v64, v64
    v_exp_f32 v65, v65
    s_lshl_b32 s3, s32, 8
    v_lshl_add_u32 v9, v2, 2, s3
    v_cvt_pk_bf16_f32 v8, v64, v65
    v_add_f32 v11, v64, v65
    ds_write_b32 v9, v8 offset:{L_P}""")
    allred64("v_add_f32", 11, 12)
    a(f"""s_lshl_b32 s3, s32, 3
    v_mov_b32 v9, s3
    s_mov_b64 exec, 1
    buffer_store_dwordx2 v[10:11], v9, s[40:43], s45 offen offset:{ML} sc1
    s_mov_b64 exec, -1
    s_waitcnt lgkmcnt(0)""")
    stamp(5)
    a(f"""v_lshrrev_b32 v8, 3, v2
    v_and_b32 v9, 7, v2
    s_lshl_b32 s3, s29, 7
    s_lshl_b32 s34, s32, 5
    s_add_u32 s3, s3, s34
    v_lshl_add_u32 v16, v8, 2, s3
    v_lshlrev_b32 v16, 10, v16
    s_lshl_b32 s46, s30, 7
    v_lshl_add_u32 v12, v9, 4, s46
    v_add_u32 v16, v16, v12
    s_mul_i32 s3, s29, 48
    s_mul_i32 s47, s32, 12
    s_add_u32 s3, s3, s47
    v_lshl_add_u32 v17, v8, 1, s3
    v_lshlrev_b32 v17, 10, v17
    v_add_u32 v17, v17, v12
    v_cmp_gt_u32 vcc, 48, v2
    v_mov_b32 v12, 0x40000000
    v_lshlrev_b32 v19, 12, v9
    v_cndmask_b32 v17, v12, v17, vcc
    v_lshl_add_u32 v18, v8, 1, s47
    v_lshl_add_u32 v18, v18, 2, v19
    v_lshl_add_u32 v20, v8, 2, s34
    v_lshl_add_u32 v20, v20, 2, v19""")
    srd(48, 12, 0x400000)
    srd(52, 20, 1376 * 1024)
    a(f"""v_and_b32 v8, 1, v2
    v_mov_b32 v9, 0xffff
    v_mov_b32 v10, 0xffff0000
    v_cmp_eq_u32 vcc, 1, v8
    v_bfe_u32 v8, v2, 1, 2
    s_nop 0
    v_cndmask_b32 v9, v9, v10, vcc""")
    for r in range(4):
        a(f"v_cmp_eq_u32 vcc, {r}, v8\ns_nop 1\nv_cndmask_b32 v{32+r}, 0, v9, vcc")
    a("s_barrier")
    stamp(6)
    for u in range(4): a(f"buffer_load_dwordx4 v[{128+4*u}:{131+4*u}], v16, s[48:51], 0 offen offset:{1024*u} {wflag}")
    for u in range(2): a(f"buffer_load_dwordx4 v[{144+4*u}:{147+4*u}], v17, s[52:55], 0 offen offset:{1024*u} {wflag}")
    a(f"""s_mov_b32 s35, {SPIN}
    L_gu:
    buffer_load_dwordx2 v[24:25], v18, s[40:43], s44 offen offset:{GU} sc1
    buffer_load_dwordx2 v[26:27], v18, s[40:43], s44 offen offset:{GU+256} sc1
    buffer_load_dwordx4 v[56:59], v19, s[40:43], s44 offen offset:{ML} sc1
    buffer_load_dwordx4 v[60:63], v19, s[40:43], s44 offen offset:{ML+16} sc1
    s_waitcnt vmcnt(0)
    v_max_f32 v8, v56, v58
    v_max3_f32 v8, v8, v60, v62""")
    allred8("v_add_f32", [24, 25, 26, 27])
    a("s_nop 0")
    allred8("v_max_f32", [8])
    for k in range(4):
        a(f"v_sub_f32 v{56+2*k}, v{56+2*k}, v8\nv_mul_f32 v{56+2*k}, {LOG2E}, v{56+2*k}\nv_exp_f32 v{56+2*k}, v{56+2*k}")
    a("""s_nop 0
    v_mul_f32 v8, v56, v57
    v_fmac_f32 v8, v58, v59
    v_fmac_f32 v8, v60, v61
    v_fmac_f32 v8, v62, v63""")
    allred8("v_add_f32", [8])
    a("""v_add_f32 v9, v24, v25
    v_add_f32 v10, v26, v27
    v_add_f32 v9, v9, v10
    v_cmp_u_f32 vcc, v8, v9
    s_cbranch_vccz L_gu_done""")
    spin_tail("L_gu")
    a("L_gu_done:")
    stamp(7)
    a("v_rcp_f32 v8, v8\ns_nop 0")
    for k in range(4): a(f"v_mul_f32 v{56+k}, v{56+2*k}, v8")
    a(f"""v_cvt_pk_bf16_f32 v8, v24, v25
    v_cvt_pk_bf16_f32 v9, v26, v27
    v_lshlrev_b32 v24, 16, v8
    v_and_b32 v25, 0xffff0000, v8
    v_lshlrev_b32 v26, 16, v9
    v_and_b32 v27, 0xffff0000, v9
    s_mov_b32 s3, 0x3d372713
    v_mul_f32 v8, v24, v24
    v_mul_f32 v9, v25, v25
    v_fma_f32 v8, v8, s3, 1.0
    v_fma_f32 v9, v9, s3, 1.0
    v_mul_f32 v8, v8, v24
    v_mul_f32 v9, v9, v25
    v_mul_f32 v8, 0xc0135761, v8
    v_mul_f32 v9, 0xc0135761, v9
    v_exp_f32 v8, v8
    v_exp_f32 v9, v9
    s_nop 0
    v_add_f32 v8, 1.0, v8
    v_add_f32 v9, 1.0, v9
    v_rcp_f32 v8, v8
    v_rcp_f32 v9, v9
    s_nop 0
    v_mul_f32 v8, v8, v24
    v_mul_f32 v9, v9, v25
    v_cvt_pk_bf16_f32 v8, v8, v9
    v_lshlrev_b32 v24, 16, v8
    v_and_b32 v25, 0xffff0000, v8
    v_mul_f32 v24, v24, v26
    v_mul_f32 v25, v25, v27
    v_cvt_pk_bf16_f32 v24, v24, v24
    v_cvt_pk_bf16_f32 v25, v25, v25""")
    for u in range(2):
        for r in range(4): a(f"v_and_b32 v{40+4*u+r}, v{24+u}, v{32+r}")
    a("""s_nop 1
    v_mfma_f32_16x16x32_bf16 v[48:51], v[40:43], v[144:147], 0
    v_mfma_f32_16x16x32_bf16 v[48:51], v[44:47], v[148:151], v[48:51]""")
    a(f"""v_lshrrev_b32 v8, 5, v2
    s_lshl_b32 s3, s32, 9
    v_lshl_add_u32 v8, v8, 8, s3
    v_and_b32 v9, 7, v2
    v_lshl_add_u32 v8, v9, 5, v8
    v_and_b32 v9, 16, v2
    v_add_u32 v21, v8, v9
    v_lshlrev_b32 v22, 2, v2
    s_mov_b32 s56, 0x00ff00ff
    s_mov_b32 s57, 0xff00ff00
    s_mov_b32 s35, {SPIN}""")
    stamp(8)
    a("L_op:")
    for k in range(4): a(f"buffer_load_dwordx4 v[{64+4*k}:{67+4*k}], v20, s[40:43], s44 offen offset:{OP+512*k} sc1")
    a("s_waitcnt vmcnt(3)")
    for u in range(4): a(f"v_mul_f32 v{24+u}, v{64+u}, v56")
    for k in range(1, 4):
        a(f"s_waitcnt vmcnt({3-k})")
        for u in range(4): a(f"v_fmac_f32 v{24+u}, v{64+4*k+u}, v{56+k}")
    allred8("v_add_f32", [24, 25, 26, 27])
    a("""v_cmp_u_f32 vcc, v24, v25
    v_cmp_u_f32 s[58:59], v26, v27
    s_or_b64 vcc, vcc, s[58:59]
    s_cbranch_vccz L_op_done""")
    spin_tail("L_op")
    a("L_op_done:")
    stamp(9)
    for u in range(4): a(f"v_cvt_pk_bf16_f32 v{24+u}, v{24+u}, v{24+u}")
    for u in range(4):
        for r in range(4): a(f"v_and_b32 v{64+4*u+r}, v{24+u}, v{32+r}")
    for u in range(4): a(f"v_mfma_f32_16x16x32_bf16 v[48:51], v[{64+4*u}:{67+4*u}], v[{128+4*u}:{131+4*u}], v[48:51]")
    a(f"""s_mov_b64 exec, s[56:57]
    s_nop 6
    ds_write_b128 v21, v[48:51] offset:{L_Y}
    s_mov_b64 exec, -1
    s_waitcnt lgkmcnt(0)
    s_barrier""")
    stamp(10)
    a("s_cmp_eq_u32 s32, 1\ns_cbranch_scc1 L_fin\ns_cmp_lg_u32 s32, 0\ns_cbranch_scc1 L_K_end")
    for k in range(4): a(f"ds_read2st64_b32 v[{8+2*k}:{9+2*k}], v22 offset0:{L_Y//256+2*k} offset1:{L_Y//256+2*k+1}")
    a(f"""s_waitcnt lgkmcnt(2)
    v_add_f32 v8, v8, v9
    v_add_f32 v10, v10, v11
    s_waitcnt lgkmcnt(0)
    v_add_f32 v12, v12, v13
    v_add_f32 v14, v14, v15
    v_add_f32 v8, v8, v10
    v_add_f32 v12, v12, v14
    v_add_f32 v8, v8, v12
    buffer_store_dword v8, v22, s[40:43], s45 offen offset:{YP} sc1""")
    stamp(11)
    a("L_K_end:")
    write_stamps()
    a("s_endpgm")
    a(f"""L_fin:
    s_lshl_b32 s3, s30, 2
    s_cmp_lg_u32 s3, s29
    s_cbranch_scc1 L_K_end
    v_lshrrev_b32 v8, 4, v2
    v_and_b32 v9, 15, v2
    v_lshlrev_b32 v10, 15, v8
    v_lshl_add_u32 v10, v9, 4, v10
    s_lshl_b32 s46, s30, 12
    v_lshrrev_b32 v11, 1, v8
    v_and_b32 v8, 1, v8
    v_lshl_add_u32 v11, v8, 1, v11
    v_lshl_add_u32 v11, v9, 2, v11
    s_lshl_b32 s3, s30, 6
    v_add_u32 v11, s3, v11
    v_lshlrev_b32 v11, 1, v11
    global_load_ushort v12, v11, s[4:5]
    v_and_b32 v8, 8, v2
    v_cmp_eq_u32 s[58:59], 0, v8
    s_mov_b32 s35, {SPIN}
    L_all:
    global_load_dword v13, v22, s[24:25] sc1
    s_waitcnt vmcnt(0)
    v_cmp_ne_u32 vcc, 8, v13
    s_and_b64 vcc, vcc, s[58:59]
    s_cbranch_vccz L_all_done""")
    spin_tail("L_all")
    a(f"L_all_done:\nv_lshlrev_b32 v12, 16, v12\ns_mov_b32 s35, {SPIN}\nL_yp:")
    for u in range(8):
        a(f"s_add_u32 s34, s46, {u*4*8*REC}\nbuffer_load_dwordx4 v[{64+4*u}:{67+4*u}], v10, s[40:43], s34 offen offset:{YP} sc1")
    for u in range(0, 8, 2):
        a(f"s_waitcnt vmcnt({6-u})")
        for k in range(4): a(f"v_add_f32 v{64+4*u+k}, v{64+4*u+k}, v{68+4*u+k}")
        if u % 4 == 2:
            for k in range(4): a(f"v_add_f32 v{56+4*u+k}, v{56+4*u+k}, v{64+4*u+k}")
    for k in range(4): a(f"v_add_f32 v{64+k}, v{64+k}, v{80+k}")
    a("""s_nop 0
    v_permlane32_swap_b32 v64, v65
    v_permlane32_swap_b32 v66, v67
    v_add_f32 v64, v64, v65
    v_add_f32 v66, v66, v67
    s_nop 1
    v_permlane16_swap_b32 v64, v66
    v_add_f32 v64, v64, v66
    v_cmp_u_f32 vcc, v64, v64
    s_cbranch_vccz L_yp_done""")
    spin_tail("L_yp")
    a("""L_yp_done:
    v_add_f32 v64, v64, v12
    v_cvt_pk_bf16_f32 v64, v64, v64
    global_store_short v11, v64, s[22:23]""")
    dstamp(9)
    stamp(12)
    write_stamps()
    a("L_end:\ns_endpgm")
    bad = lint(a.L)
    for b in bad: print("HAZARD need %d have %d:\n   %s\n   %s" % (b[2], b[3], b[0], b[1]), file=sys.stderr)
    return a.text() + footer()

if __name__ == "__main__":
    V = {"v2": {}, "v2_w4": dict(WK=4, WV=4), "v2_w8": dict(WK=8, WV=8), "v2_w5": dict(WK=5, WV=8), "v2_plain": dict(kvflag="", wflag=""), "v2_wplain": dict(wflag="")}
    for n, kw in V.items():
        open(f"exp/{n}.s", "w").write(gen(**kw))
        open(f"exp/{n}_st.s", "w").write(gen(stamps=True, **kw))
        open(f"exp/{n}_dg.s", "w").write(gen(diag=True, **kw))
```

```python
import sys
from asmlib import *

REC = 4096
GU, OP, YP, ML = 512, 1024, 3072, 3328
L_XN, L_FLAG, L_P, L_Y, L_QP, L_GP = 0, 1280, 2048, 4096, 6144, 8192
LDS = 10240
SPIN = 20000
LOG2E = 0x3fb8aa3b

def gen(stamps=False, kvflag="nt", wflag="nt", qflag="", WK=7, WQ=5, WV=7, vfree=8, gate_at=29, diag=False):
    a = Asm()
    def stamp(j):
        if stamps: a(f"s_memrealtime s[{64+2*j}:{65+2*j}]")
    def srd(d, b, n):
        a(f"s_mov_b32 s{d}, s{b}\ns_mov_b32 s{d+1}, s{b+1}\ns_mov_b32 s{d+2}, {n}\ns_mov_b32 s{d+3}, 0x20000")
    def allred16(op, r):
        for k in (8, 4, 2, 1):
            a(f"s_nop 1\n{op}_dpp v{r}, v{r}, v{r} row_ror:{k} row_mask:0xf bank_mask:0xf")
    def allred64(op, r, t):
        allred16(op, r)
        for sw in ("v_permlane16_swap_b32", "v_permlane32_swap_b32"):
            a(f"v_mov_b32 v{t}, v{r}\ns_nop 1\n{sw} v{r}, v{t}\n{op} v{r}, v{r}, v{t}")
    def allred8(op, rs):
        for m in ("quad_perm:[1,0,3,2]", "quad_perm:[2,3,0,1]", "row_half_mirror"):
            if len(rs) < 3: a(f"s_nop {2-len(rs)}")
            for r in rs: a(f"{op}_dpp v{r}, v{r}, v{r} {m} row_mask:0xf bank_mask:0xf")
    def bulk(t0, t1, W, free=0, sig=-1):
        for t in range(t0, t1):
            if t % 4 == 0: a(f"s_add_u32 s34, s33, {t*1024}")
            if W and t >= W and t < 32 - free: a(f"s_waitcnt vmcnt({W-1})")
            if t == sig + 1 and sig >= 0: a(f"s_mov_b64 exec, 1\nds_add_u32 v8, v9 offset:{L_FLAG+8}\ns_mov_b64 exec, -1")
            a(f"buffer_load_dwordx4 v[{128+4*t}:{131+4*t}], v3, s[36:39], s34 offen offset:{(t%4)*1024} {kvflag}")
    def spin_tail(lbl):
        a(f"s_sub_u32 s35, s35, 1\ns_cmp_lg_u32 s35, 0\ns_cbranch_scc1 {lbl}")
    def lds_wait(name, off, sleep):
        a(f"""s_mov_b32 s35, {SPIN*8}
        L_{name}:
        ds_read_b32 v10, v8 offset:{off}
        s_waitcnt lgkmcnt(0)
        v_readfirstlane_b32 s3, v10
        s_cmp_ge_u32 s3, 4
        s_cbranch_scc1 L_{name}_done
        s_sleep {sleep}""")
        spin_tail(f"L_{name}")
        a(f"L_{name}_done:")
    def dstamp(j, reg=None):
        if not diag: return
        if reg is None: a("s_memrealtime s[60:61]\ns_waitcnt lgkmcnt(0)")
        a(f"s_mov_b64 exec, 1\nv_mov_b32 v126, s{60 if reg is None else reg}\nv_mov_b32 v127, {4*j}\nglobal_store_dword v127, v126, s[24:25] sc1")
    def write_stamps():
        if not stamps: return
        a("s_waitcnt lgkmcnt(0)\ns_mov_b64 exec, 1")
        a(f"s_lshl_b32 s34, s2, 3\ns_add_u32 s34, s34, s31\ns_lshl_b32 s34, s34, 7\ns_add_u32 s34, s34, {128<<20}\nv_mov_b32 v2, s34")
        for j in range(16):
            a(f"v_mov_b32 v4, s{64+2*j}\nv_mov_b32 v5, s{65+2*j}\nbuffer_store_dwordx2 v[4:5], v2, s[40:43], 0 offen offset:{8*j}")

    a(f"; @launch grid=(256,1,1) block=(512,1,1) lds={LDS}")
    a('.amdgcn_target "amdgcn-amd-amdhsa--gfx950"\n.text')
    a(f".globl {KN}\n.p2align 8\n.type {KN},@function\n{KN}:")
    if stamps:
        for j in range(1, 16): a(f"s_mov_b64 s[{64+2*j}:{65+2*j}], 0")
    stamp(0)
    if diag: a("s_memrealtime s[62:63]")
    a("""s_load_dwordx16 s[4:19], s[0:1], 0
    s_load_dwordx8 s[20:27], s[0:1], 64
    s_cmp_ge_u32 s2, 256
    s_cbranch_scc1 L_end
    v_lshrrev_b32 v1, 6, v0
    v_and_b32 v2, 63, v0
    s_and_b32 s3, s2, 7
    v_readfirstlane_b32 s31, v1
    s_lshr_b32 s28, s2, 3
    s_lshl_b32 s3, s3, 2
    s_and_b32 s29, s28, 3
    s_or_b32 s29, s29, s3
    s_lshr_b32 s30, s28, 2
    v_lshlrev_b32 v3, 4, v2
    s_and_b32 s32, s31, 3
    s_lshl_b32 s33, s29, 20
    s_lshl_b32 s3, s30, 17
    s_add_u32 s33, s33, s3
    s_lshl_b32 s3, s32, 15
    s_add_u32 s33, s33, s3
    s_lshl_b32 s44, s29, 3
    s_add_u32 s45, s44, s30
    s_lshl_b32 s44, s44, 12
    s_lshl_b32 s45, s45, 12
    s_cmp_ge_u32 s31, 4
    s_cbranch_scc1 L_K""")
    a("""v_lshrrev_b32 v8, 4, v2
    v_and_b32 v9, 15, v2
    v_lshlrev_b32 v11, 18, v8
    v_lshl_add_u32 v11, v9, 4, v11
    s_lshl_b32 s46, s29, 8
    s_lshl_b32 s3, s32, 20
    s_add_u32 s46, s46, s3
    s_lshl_b32 s3, s30, 6
    s_lshl_b32 s34, s32, 2
    s_add_u32 s3, s3, s34
    v_lshl_add_u32 v10, v8, 4, s3
    v_and_b32 v12, 7, v9
    s_mul_i32 s3, s29, 6
    v_add_u32 v12, s3, v12
    v_min_u32 v12, 171, v12
    v_mul_u32_u24 v13, 2752, v10
    v_lshl_add_u32 v12, v12, 4, v13
    v_add_u32 v12, 2752, v12
    v_mov_b32 v13, 0
    v_cmp_lt_u32 vcc, 7, v9
    v_mov_b32 v24, -1
    v_mov_b32 v25, -1
    v_mov_b32 v26, -1
    v_mov_b32 v27, -1
    s_waitcnt lgkmcnt(0)""")
    stamp(1)
    srd(40, 26, 0x10000000)
    a("s_cmp_lg_u32 s31, 1\ns_cbranch_scc1 L_noclr")
    for k in range(4):
        a(f"buffer_store_dwordx4 v[24:27], v3, s[40:43], s45 offen offset:{1024*k} sc1")
    a("L_noclr:\nglobal_load_dwordx4 v[4:7], v3, s[4:5]")
    srd(48, 10, 0x400000)
    def wq(t):
        a(f"s_add_u32 s34, s46, {t*8192}\nbuffer_load_dwordx4 v[{128+4*t}:{131+4*t}], v11, s[48:51], s34 offen {qflag}")
    for t in range(WQ): wq(t)
    a("""v_mov_b32 v14, s16
    v_mov_b32 v15, s17
    v_mov_b32 v16, s18
    v_mov_b32 v17, s19
    v_cndmask_b32 v14, v14, v16, vcc
    v_cndmask_b32 v15, v15, v17, vcc
    v_lshl_add_u64 v[14:15], v[12:13], 0, v[14:15]
    s_mov_b64 s[52:53], 5504
    v_mov_b32 v28, 0
    v_mov_b32 v29, 0
    v_mov_b32 v30, 0""")
    for t in range(3): a(f"global_load_dwordx4 v[{96+4*t}:{99+4*t}], v[14:15], off offset:{(t-1)*2752} {wflag}")
    a(f"v_lshl_add_u64 v[14:15], v[14:15], 0, s[52:53]\nglobal_load_dwordx4 v[108:111], v[14:15], off {wflag}")
    a(f"ds_write_b96 v28, v[28:30] offset:{L_FLAG}\ns_waitcnt lgkmcnt(0)\ns_barrier")
    stamp(2)
    a("""v_and_b32 v8, 1, v2
    v_mov_b32 v9, 0x0c0c0100
    v_mov_b32 v10, 0x01000c0c
    v_cmp_eq_u32 vcc, 1, v8
    v_mov_b32 v12, 0x0c0c0302
    v_mov_b32 v13, 0x03020c0c
    v_cndmask_b32 v9, v9, v10, vcc
    v_cndmask_b32 v12, v12, v13, vcc
    v_bfe_u32 v8, v2, 1, 3
    v_mov_b32 v10, 0x0c0c0c0c""")
    for r in range(4):
        a(f"v_cmp_eq_u32 vcc, {r}, v8\ns_nop 1\nv_cndmask_b32 v{32+2*r}, v10, v9, vcc\nv_cndmask_b32 v{33+2*r}, v10, v12, vcc")
    a(f"""v_and_b32 v9, 15, v2
    v_lshlrev_b32 v9, 5, v9
    v_and_b32 v10, 16, v2
    v_add_u32 v31, v9, v10
    v_mov_b32 v30, 1
    s_waitcnt vmcnt({WQ+4})""")
    stamp(3)
    a("""s_cmp_lg_u32 s31, 1
    s_cbranch_scc1 L_nosig
    s_and_b32 s3, s29, 3
    s_lshl_b32 s3, s3, 4
    s_lshr_b32 s34, s29, 2
    s_add_u32 s3, s3, s34
    s_lshl_b32 s3, s3, 2
    v_mov_b32 v29, s3
    s_mov_b64 exec, 1
    global_atomic_add v29, v30, s[24:25] sc1
    s_mov_b64 exec, -1
    L_nosig:""")
    for k in range(4):
        a(f"v_lshlrev_b32 v{72+2*k}, 16, v{4+k}\nv_and_b32 v{73+2*k}, 0xffff0000, v{4+k}")
    a("""v_add_f32 v16, v72, v73
    v_add_f32 v17, v74, v75
    v_add_f32 v18, v76, v77
    v_add_f32 v19, v78, v79
    v_add_f32 v16, v16, v17
    v_add_f32 v18, v18, v19
    v_add_f32 v16, v16, v18""")
    allred64("v_add_f32", 16, 17)
    a("v_mul_f32 v16, 0x3b000000, v16")
    a("v_sub_f32 v18, v72, v16\nv_mul_f32 v17, v18, v18")
    for k in range(1, 8): a(f"v_sub_f32 v18, v{72+k}, v16\nv_fmac_f32 v17, v18, v18")
    allred64("v_add_f32", 17, 18)
    a("""v_mul_f32 v17, 0x3b000000, v17
    v_cvt_pk_bf16_f32 v16, v16, v17
    v_and_b32 v17, 0xffff0000, v16
    v_lshlrev_b32 v16, 16, v16
    v_add_f32 v17, 0x3727c5ac, v17
    v_cvt_pk_bf16_f32 v17, v17, v17
    v_and_b32 v17, 0xffff0000, v17
    v_sqrt_f32 v17, v17
    s_nop 0
    v_cvt_pk_bf16_f32 v17, v17, v17
    v_and_b32 v17, 0xffff0000, v17
    v_rcp_f32 v18, v17""")
    for k in range(4):
        lo, hi = 72 + 2 * k, 73 + 2 * k
        a(f"""v_sub_f32 v{lo}, v{lo}, v16
        v_sub_f32 v{hi}, v{hi}, v16
        v_cvt_pk_bf16_f32 v19, v{lo}, v{hi}
        v_lshlrev_b32 v{lo}, 16, v19
        v_and_b32 v{hi}, 0xffff0000, v19
        v_mul_f32 v19, v{lo}, v18
        v_mul_f32 v20, v{hi}, v18
        v_fma_f32 v{lo}, -v19, v17, v{lo}
        v_fma_f32 v{hi}, -v20, v17, v{hi}
        v_fma_f32 v19, v{lo}, v18, v19
        v_fma_f32 v20, v{hi}, v18, v20
        v_cvt_pk_bf16_f32 v{4+k}, v19, v20""")
    a(f"""ds_write_b128 v3, v[4:7] offset:{L_XN}
    v_lshrrev_b32 v8, 4, v2
    s_lshl_b32 s3, s32, 8
    v_lshl_add_u32 v9, v8, 6, s3
    s_lshl_b32 s3, s30, 7
    s_lshl_b32 s34, s32, 3
    s_add_u32 s3, s3, s34
    v_lshl_add_u32 v8, v8, 5, s3
    s_waitcnt lgkmcnt(0)""")
    for k in range(4): a(f"ds_read_b128 v[{56+4*k}:{59+4*k}], v9 offset:{L_XN+16*k}")
    a(f"ds_read_b64 v[72:73], v8 offset:{L_XN}\ns_waitcnt lgkmcnt(0)")
    stamp(4)
    for t in range(32):
        A = 40 + 4 * (t & 1)
        for r in range(4): a(f"v_perm_b32 v{A+r}, v{56+t//2}, v{56+t//2}, v{32+2*r+(t&1)}")
        if t == 0: a("s_nop 0\ns_waitcnt vmcnt(0)")
        elif t >= WQ: a(f"s_nop 0\ns_waitcnt vmcnt({min(WQ-1, 31-t)})")
        else: a("s_nop 1")
        a(f"v_mfma_f32_16x16x32_bf16 v[48:51], v[{A}:{A+3}], v[{128+4*t}:{131+4*t}], {'0' if t == 0 else 'v[48:51]'}")
        if t == 0:
            for u in range(WQ, 2 * WQ): wq(u)
        elif t >= WQ and t + WQ < 32: wq(t + WQ)
        if t == 2:
            for u in range(4):
                B = 80 + 4 * (u & 1)
                for r in range(4): a(f"v_perm_b32 v{B+r}, v{72+u//2}, v{72+u//2}, v{32+2*r+(u&1)}")
                a(f"s_nop 1\nv_mfma_f32_16x16x32_bf16 v[52:55], v[{B}:{B+3}], v[{96+4*u}:{99+4*u}], {'0' if u == 0 else 'v[52:55]'}")
    a(f"""s_lshl_b32 s3, s32, 9
    v_add_u32 v9, s3, v31
    v_mov_b32 v8, 0
    s_mov_b32 exec_hi, 0
    ds_write_b128 v9, v[52:55] offset:{L_GP}
    s_nop 2
    ds_write_b128 v9, v[48:51] offset:{L_QP}
    s_mov_b64 exec, 1
    s_waitcnt lgkmcnt(0)
    ds_add_u32 v8, v30 offset:{L_FLAG}
    s_mov_b64 exec, -1""")
    stamp(5)
    srd(36, 8, 0x2000000)
    lds_wait("gate", L_FLAG + 8, 1)
    stamp(6)
    bulk(0, 32, WV, vfree)
    stamp(9)
    a(f"""v_lshrrev_b32 v8, 4, v2
    s_lshl_b32 s3, s32, 8
    v_lshl_add_u32 v8, v8, 6, s3
    s_lshl_b32 s3, s32, 9
    s_add_u32 s46, s45, s3
    s_barrier""")
    stamp(10)
    for k in range(4): a(f"ds_read_b128 v[{56+4*k}:{59+4*k}], v8 offset:{L_P+16*k}")
    a("s_waitcnt lgkmcnt(0)")
    for t in range(32):
        A = 40 + 4 * (t & 1)
        for r in range(4): a(f"v_perm_b32 v{A+r}, v{56+t//2}, v{56+t//2}, v{32+2*r+(t&1)}")
        a(f"s_nop 0\ns_waitcnt vmcnt({31-t})" if t >= 32 - vfree - WV else "s_nop 1")
        a(f"v_mfma_f32_16x16x32_bf16 v[48:51], v[{A}:{A+3}], v[{128+4*t}:{131+4*t}], {'0' if t == 0 else 'v[48:51]'}")
    stamp(11)
    a(f"s_mov_b32 exec_hi, 0\ns_nop 6\nbuffer_store_dwordx4 v[48:51], v31, s[40:43], s46 offen offset:{OP} sc1")
    if diag:
        a("s_cmp_lg_u32 s2, 0\ns_cbranch_scc1 L_nodg\ns_cmp_lg_u32 s31, 0\ns_cbranch_scc1 L_nodg")
        dstamp(8, 62); dstamp(9)
        a("L_nodg:")
    write_stamps()
    a("s_endpgm")
    a("L_K:\nv_mov_b32 v8, 0\nv_mov_b32 v9, 1\ns_waitcnt lgkmcnt(0)")
    stamp(1)
    srd(36, 6, 0x2000000)
    bulk(0, WK, WK)
    a("s_barrier")
    bulk(WK, 32, WK, 0, gate_at)
    stamp(2)
    srd(40, 26, 0x10000000)
    a("v_lshlrev_b32 v22, 2, v2\nv_and_b32 v9, 15, v2\nv_lshlrev_b32 v9, 5, v9")
    lds_wait("qf", L_FLAG, 2)
    for w in range(4):
        a(f"ds_read_b128 v[{64+8*w}:{67+8*w}], v9 offset:{L_QP+512*w}\nds_read_b128 v[{68+8*w}:{71+8*w}], v9 offset:{L_QP+512*w+16}")
    a("s_waitcnt lgkmcnt(4)")
    for k in range(8): a(f"v_add_f32 v{64+k}, v{64+k}, v{72+k}")
    a("s_waitcnt lgkmcnt(0)")
    for k in range(8): a(f"v_add_f32 v{80+k}, v{80+k}, v{88+k}")
    for k in range(8): a(f"v_add_f32 v{64+k}, v{64+k}, v{80+k}")
    for k in range(4): a(f"v_cvt_pk_bf16_f32 v{4+k}, v{64+2*k}, v{65+2*k}")
    stamp(3)
    for grp in range(4):
        if grp == 3: a("s_waitcnt vmcnt(0)")
        elif 24 - 8 * grp < WK: a(f"s_waitcnt vmcnt({24-8*grp})")
        for k in range(4):
            for t in range(8 * grp, 8 * grp + 8):
                if k == 0: a(f"v_dot2_f32_bf16 v{64+t}, v{128+4*t}, v4, 0")
                else: a(f"v_dot2_f32_bf16 v{64+t}, v{128+4*t+k}, v{4+k}, v{64+t}")
    stamp(4)
    a(f"""s_cmp_lg_u32 s32, 0
    s_cbranch_scc1 L_nochk
    global_load_dword v23, v22, s[24:25] sc1
    L_nochk:
    s_cmp_lg_u32 s32, 1
    s_cbranch_scc1 L_nogp
    s_mov_b32 exec_hi, 0""")
    for w in range(4): a(f"ds_read_b128 v[{96+4*w}:{99+4*w}], v3 offset:{L_GP+512*w}")
    a("s_waitcnt lgkmcnt(0)")
    for k in range(4): a(f"v_add_f32 v{96+k}, v{96+k}, v{100+k}\nv_add_f32 v{104+k}, v{104+k}, v{108+k}")
    for k in range(4): a(f"v_add_f32 v{96+k}, v{96+k}, v{104+k}")
    a(f"buffer_store_dwordx4 v[96:99], v3, s[40:43], s45 offen offset:{GU} sc1\ns_mov_b32 exec_hi, -1\nL_nogp:\ns_nop 1")
    for t in range(16):
        a(f"v_add_f32_dpp v{64+t}, v{64+t}, v{64+t} row_shl:8 row_mask:0xf bank_mask:0x3")
    for t in range(16):
        a(f"v_add_f32_dpp v{64+t}, v{80+t}, v{80+t} row_shr:8 row_mask:0xf bank_mask:0xc")
    for t in range(8):
        a(f"v_add_f32_dpp v{64+t}, v{64+t}, v{64+t} row_shl:4 row_mask:0xf bank_mask:0x5")
    for t in range(8):
        a(f"v_add_f32_dpp v{64+t}, v{72+t}, v{72+t} row_shr:4 row_mask:0xf bank_mask:0xa")
    a("v_and_b32 v8, 2, v2\nv_cmp_ne_u32 vcc, 0, v8")
    for t in range(8):
        a(f"v_add_f32_dpp v{64+t}, v{64+t}, v{64+t} quad_perm:[2,3,0,1] row_mask:0xf bank_mask:0xf")
    for t in range(4): a(f"v_cndmask_b32 v{64+t}, v{64+t}, v{68+t}, vcc")
    a("v_and_b32 v8, 1, v2\nv_cmp_ne_u32 vcc, 0, v8")
    for t in range(4):
        a(f"v_add_f32_dpp v{64+t}, v{64+t}, v{64+t} quad_perm:[1,0,3,2] row_mask:0xf bank_mask:0xf")
    for t in range(2): a(f"v_cndmask_b32 v{64+t}, v{64+t}, v{66+t}, vcc")
    a(f"""v_cvt_pk_bf16_f32 v8, v64, v65
    v_lshlrev_b32 v64, 16, v8
    v_and_b32 v65, 0xffff0000, v8
    v_mul_f32 v64, 0x3db504f3, v64
    v_mul_f32 v65, 0x3db504f3, v65
    v_cvt_pk_bf16_f32 v8, v64, v65
    v_lshlrev_b32 v64, 16, v8
    v_and_b32 v65, 0xffff0000, v8
    v_max_f32 v10, v64, v65""")
    allred64("v_max_f32", 10, 11)
    a(f"""v_sub_f32 v64, v64, v10
    v_sub_f32 v65, v65, v10
    v_mul_f32 v64, {LOG2E}, v64
    v_mul_f32 v65, {LOG2E}, v65
    v_exp_f32 v64, v64
    v_exp_f32 v65, v65
    s_lshl_b32 s3, s32, 8
    v_lshl_add_u32 v9, v2, 2, s3
    v_cvt_pk_bf16_f32 v8, v64, v65
    v_add_f32 v11, v64, v65
    ds_write_b32 v9, v8 offset:{L_P}""")
    allred64("v_add_f32", 11, 12)
    a(f"""s_lshl_b32 s3, s32, 3
    v_mov_b32 v9, s3
    s_mov_b64 exec, 1
    buffer_store_dwordx2 v[10:11], v9, s[40:43], s45 offen offset:{ML} sc1
    s_mov_b64 exec, -1
    s_waitcnt lgkmcnt(0)""")
    stamp(5)
    a(f"""v_lshrrev_b32 v8, 3, v2
    v_and_b32 v9, 7, v2
    s_lshl_b32 s3, s29, 7
    s_lshl_b32 s34, s32, 5
    s_add_u32 s3, s3, s34
    v_lshl_add_u32 v16, v8, 2, s3
    v_lshlrev_b32 v16, 10, v16
    s_lshl_b32 s46, s30, 7
    v_lshl_add_u32 v12, v9, 4, s46
    v_add_u32 v16, v16, v12
    s_mul_i32 s3, s29, 48
    s_mul_i32 s47, s32, 12
    s_add_u32 s3, s3, s47
    v_lshl_add_u32 v17, v8, 1, s3
    v_lshlrev_b32 v17, 10, v17
    v_add_u32 v17, v17, v12
    v_cmp_gt_u32 vcc, 48, v2
    v_mov_b32 v12, 0x40000000
    v_lshlrev_b32 v19, 12, v9
    v_cndmask_b32 v17, v12, v17, vcc
    v_lshl_add_u32 v18, v8, 1, s47
    v_lshl_add_u32 v18, v18, 2, v19
    v_lshl_add_u32 v20, v8, 2, s34
    v_lshl_add_u32 v20, v20, 2, v19""")
    srd(48, 12, 0x400000)
    srd(52, 20, 1376 * 1024)
    a(f"""v_and_b32 v8, 1, v2
    v_mov_b32 v9, 0xffff
    v_mov_b32 v10, 0xffff0000
    v_cmp_eq_u32 vcc, 1, v8
    v_bfe_u32 v8, v2, 1, 2
    s_nop 0
    v_cndmask_b32 v9, v9, v10, vcc""")
    for r in range(4):
        a(f"v_cmp_eq_u32 vcc, {r}, v8\ns_nop 1\nv_cndmask_b32 v{32+r}, 0, v9, vcc")
    a(f"""s_cmp_lg_u32 s32, 0
    s_cbranch_scc1 L_all_done
    v_and_b32 v8, 8, v2
    v_cmp_eq_u32 s[58:59], 0, v8
    s_mov_b32 s35, {SPIN}
    L_all:
    s_waitcnt vmcnt(0)
    v_cmp_gt_u32 vcc, 8, v23
    s_and_b64 vcc, vcc, s[58:59]
    s_cbranch_vccz L_all_done
    s_sleep 8
    global_load_dword v23, v22, s[24:25] sc1""")
    spin_tail("L_all")
    a("L_all_done:")
    stamp(13)
    a("s_barrier")
    stamp(6)
    for u in range(4): a(f"buffer_load_dwordx4 v[{128+4*u}:{131+4*u}], v16, s[48:51], 0 offen offset:{1024*u} {wflag}")
    for u in range(2): a(f"buffer_load_dwordx4 v[{144+4*u}:{147+4*u}], v17, s[52:55], 0 offen offset:{1024*u} {wflag}")
    a(f"""s_mov_b32 s35, {SPIN}
    L_gu:
    buffer_load_dwordx2 v[24:25], v18, s[40:43], s44 offen offset:{GU} sc1
    buffer_load_dwordx2 v[26:27], v18, s[40:43], s44 offen offset:{GU+256} sc1
    buffer_load_dwordx4 v[56:59], v19, s[40:43], s44 offen offset:{ML} sc1
    buffer_load_dwordx4 v[60:63], v19, s[40:43], s44 offen offset:{ML+16} sc1
    s_waitcnt vmcnt(0)
    v_max_f32 v8, v56, v58
    v_max3_f32 v8, v8, v60, v62""")
    allred8("v_add_f32", [24, 25, 26, 27])
    a("s_nop 0")
    allred8("v_max_f32", [8])
    for k in range(4):
        a(f"v_sub_f32 v{56+2*k}, v{56+2*k}, v8\nv_mul_f32 v{56+2*k}, {LOG2E}, v{56+2*k}\nv_exp_f32 v{56+2*k}, v{56+2*k}")
    a("""s_nop 0
    v_mul_f32 v8, v56, v57
    v_fmac_f32 v8, v58, v59
    v_fmac_f32 v8, v60, v61
    v_fmac_f32 v8, v62, v63""")
    allred8("v_add_f32", [8])
    a("""v_add_f32 v9, v24, v25
    v_add_f32 v10, v26, v27
    v_add_f32 v9, v9, v10
    v_cmp_u_f32 vcc, v8, v9
    s_cbranch_vccz L_gu_done""")
    spin_tail("L_gu")
    a("L_gu_done:")
    stamp(7)
    a("v_rcp_f32 v8, v8\ns_nop 0")
    for k in range(4): a(f"v_mul_f32 v{56+k}, v{56+2*k}, v8")
    a(f"""v_cvt_pk_bf16_f32 v8, v24, v25
    v_cvt_pk_bf16_f32 v9, v26, v27
    v_lshlrev_b32 v24, 16, v8
    v_and_b32 v25, 0xffff0000, v8
    v_lshlrev_b32 v26, 16, v9
    v_and_b32 v27, 0xffff0000, v9
    s_mov_b32 s3, 0x3d372713
    v_mul_f32 v8, v24, v24
    v_mul_f32 v9, v25, v25
    v_fma_f32 v8, v8, s3, 1.0
    v_fma_f32 v9, v9, s3, 1.0
    v_mul_f32 v8, v8, v24
    v_mul_f32 v9, v9, v25
    v_mul_f32 v8, 0xc0135761, v8
    v_mul_f32 v9, 0xc0135761, v9
    v_exp_f32 v8, v8
    v_exp_f32 v9, v9
    s_nop 0
    v_add_f32 v8, 1.0, v8
    v_add_f32 v9, 1.0, v9
    v_rcp_f32 v8, v8
    v_rcp_f32 v9, v9
    s_nop 0
    v_mul_f32 v8, v8, v24
    v_mul_f32 v9, v9, v25
    v_cvt_pk_bf16_f32 v8, v8, v9
    v_lshlrev_b32 v24, 16, v8
    v_and_b32 v25, 0xffff0000, v8
    v_mul_f32 v24, v24, v26
    v_mul_f32 v25, v25, v27
    v_cvt_pk_bf16_f32 v24, v24, v24
    v_cvt_pk_bf16_f32 v25, v25, v25""")
    for u in range(2):
        for r in range(4): a(f"v_and_b32 v{40+4*u+r}, v{24+u}, v{32+r}")
    a("""s_nop 1
    v_mfma_f32_16x16x32_bf16 v[48:51], v[40:43], v[144:147], 0
    v_mfma_f32_16x16x32_bf16 v[48:51], v[44:47], v[148:151], v[48:51]""")
    a(f"""v_lshrrev_b32 v8, 5, v2
    s_lshl_b32 s3, s32, 9
    v_lshl_add_u32 v8, v8, 8, s3
    v_and_b32 v9, 7, v2
    v_lshl_add_u32 v8, v9, 5, v8
    v_and_b32 v9, 16, v2
    v_add_u32 v21, v8, v9
    s_mov_b32 s56, 0x00ff00ff
    s_mov_b32 s57, 0xff00ff00
    s_mov_b32 s35, {SPIN}""")
    stamp(8)
    a("L_op:")
    for k in range(4): a(f"buffer_load_dwordx4 v[{64+4*k}:{67+4*k}], v20, s[40:43], s44 offen offset:{OP+512*k} sc1")
    a("s_waitcnt vmcnt(3)")
    for u in range(4): a(f"v_mul_f32 v{24+u}, v{64+u}, v56")
    for k in range(1, 4):
        a(f"s_waitcnt vmcnt({3-k})")
        for u in range(4): a(f"v_fmac_f32 v{24+u}, v{64+4*k+u}, v{56+k}")
    allred8("v_add_f32", [24, 25, 26, 27])
    a("""v_cmp_u_f32 vcc, v24, v25
    v_cmp_u_f32 s[58:59], v26, v27
    s_or_b64 vcc, vcc, s[58:59]
    s_cbranch_vccz L_op_done""")
    spin_tail("L_op")
    a("L_op_done:")
    stamp(9)
    for u in range(4): a(f"v_cvt_pk_bf16_f32 v{24+u}, v{24+u}, v{24+u}")
    for u in range(4):
        for r in range(4): a(f"v_and_b32 v{64+4*u+r}, v{24+u}, v{32+r}")
    for u in range(4): a(f"v_mfma_f32_16x16x32_bf16 v[48:51], v[{64+4*u}:{67+4*u}], v[{128+4*u}:{131+4*u}], v[48:51]")
    a(f"""s_mov_b64 exec, s[56:57]
    s_nop 6
    ds_write_b128 v21, v[48:51] offset:{L_Y}
    s_mov_b64 exec, -1
    s_waitcnt lgkmcnt(0)
    s_barrier""")
    stamp(10)
    a("s_cmp_eq_u32 s32, 1\ns_cbranch_scc1 L_fin\ns_cmp_lg_u32 s32, 0\ns_cbranch_scc1 L_K_end")
    for k in range(4): a(f"ds_read2st64_b32 v[{8+2*k}:{9+2*k}], v22 offset0:{L_Y//256+2*k} offset1:{L_Y//256+2*k+1}")
    a(f"""s_waitcnt lgkmcnt(2)
    v_add_f32 v8, v8, v9
    v_add_f32 v10, v10, v11
    s_waitcnt lgkmcnt(0)
    v_add_f32 v12, v12, v13
    v_add_f32 v14, v14, v15
    v_add_f32 v8, v8, v10
    v_add_f32 v12, v12, v14
    v_add_f32 v8, v8, v12
    buffer_store_dword v8, v22, s[40:43], s45 offen offset:{YP} sc1""")
    stamp(11)
    a("L_K_end:")
    write_stamps()
    a("s_endpgm")
    a(f"""L_fin:
    s_lshl_b32 s3, s30, 2
    s_cmp_lg_u32 s3, s29
    s_cbranch_scc1 L_K_end
    v_lshrrev_b32 v8, 4, v2
    v_and_b32 v9, 15, v2
    v_lshlrev_b32 v10, 15, v8
    v_lshl_add_u32 v10, v9, 4, v10
    s_lshl_b32 s46, s30, 12
    v_lshrrev_b32 v11, 1, v8
    v_and_b32 v8, 1, v8
    v_lshl_add_u32 v11, v8, 1, v11
    v_lshl_add_u32 v11, v9, 2, v11
    s_lshl_b32 s3, s30, 6
    v_add_u32 v11, s3, v11
    v_lshlrev_b32 v11, 1, v11
    global_load_ushort v12, v11, s[4:5]
    s_mov_b32 s35, {SPIN}
    L_yp:""")
    for u in range(8):
        a(f"s_add_u32 s34, s46, {u*4*8*REC}\nbuffer_load_dwordx4 v[{64+4*u}:{67+4*u}], v10, s[40:43], s34 offen offset:{YP} sc1")
    for u in range(0, 8, 2):
        a(f"s_waitcnt vmcnt({6-u})")
        for k in range(4): a(f"v_add_f32 v{64+4*u+k}, v{64+4*u+k}, v{68+4*u+k}")
        if u % 4 == 2:
            for k in range(4): a(f"v_add_f32 v{56+4*u+k}, v{56+4*u+k}, v{64+4*u+k}")
    for k in range(4): a(f"v_add_f32 v{64+k}, v{64+k}, v{80+k}")
    a("""s_nop 0
    v_permlane32_swap_b32 v64, v65
    v_permlane32_swap_b32 v66, v67
    v_add_f32 v64, v64, v65
    v_add_f32 v66, v66, v67
    s_nop 1
    v_permlane16_swap_b32 v64, v66
    v_add_f32 v64, v64, v66
    v_cmp_u_f32 vcc, v64, v64
    s_cbranch_vccz L_yp_done""")
    spin_tail("L_yp")
    a("""L_yp_done:
    v_lshlrev_b32 v12, 16, v12
    v_add_f32 v64, v64, v12
    v_cvt_pk_bf16_f32 v64, v64, v64
    global_store_short v11, v64, s[22:23]""")
    if diag:
        a("s_cmp_lg_u32 s30, 0\ns_cbranch_scc1 L_end")
        dstamp(10)
    stamp(12)
    write_stamps()
    a("L_end:\ns_endpgm")
    bad = lint(a.L)
    for b in bad: print("HAZARD need %d have %d:\n   %s\n   %s" % (b[2], b[3], b[0], b[1]), file=sys.stderr)
    return a.text() + footer()

if __name__ == "__main__":
    V = {"v3": {}, "v3_a": dict(WK=6, WQ=4, WV=6), "v3_b": dict(WK=8, WQ=4, WV=8), "v3_c": dict(WK=6, WQ=6, WV=8), "v3_plain": dict(kvflag="", wflag=""), "v3_qnt": dict(qflag="nt")}
    for n, kw in V.items():
        open(f"exp/{n}.s", "w").write(gen(**kw))
        open(f"exp/{n}_st.s", "w").write(gen(stamps=True, **kw))
        open(f"exp/{n}_dg.s", "w").write(gen(diag=True, **kw))
```

```python
import sys
from asmlib import *

REC = 4096
HREC = 8 * REC
QP, GU, OP, OPS, YP, XI, ML = 0, 512, 1024, 512, 3072, 3328, 3456
L_XN, L_Q, L_FLAG, L_ML, L_P, L_Y = 0, 1024, 1296, 1536, 2048, 4096
L_LOC = L_Q + 256
F_Q, F_GATE, F_P, F_VI, F_CLR, F_OP = [L_FLAG + 4 * k for k in range(6)]
LDS = 6144
SPIN = 20000
LOG2E = 0x3fb8aa3b

def gen(stamps=False, kvflag="nt", wflag="nt", WK=7, WV=7, WKe=None, WVe=None, gate_at=28, wo_at=31, chk_at=24, qp_at=31,
        diag=False, pf="sc1", sf="sc1", of="", local=True, opwait=True, late_wo=True):
    a = Asm()
    def stamp(j):
        if stamps: a(f"s_memrealtime s[{64+2*j}:{65+2*j}]")
    def srd(d, b, n):
        a(f"s_mov_b32 s{d}, s{b}\ns_mov_b32 s{d+1}, s{b+1}\ns_mov_b32 s{d+2}, {n}\ns_mov_b32 s{d+3}, 0x20000")
    def allred16(op, r):
        for k in (8, 4, 2, 1):
            a(f"s_nop 1\n{op}_dpp v{r}, v{r}, v{r} row_ror:{k} row_mask:0xf bank_mask:0xf")
    def allred(op, r, t, n=64):
        allred16(op, r)
        for sw in ("v_permlane16_swap_b32", "v_permlane32_swap_b32")[:n // 32]:
            a(f"v_mov_b32 v{t}, v{r}\ns_nop 1\n{sw} v{r}, v{t}\n{op} v{r}, v{r}, v{t}")
    def allred8(op, rs):
        for m in ("quad_perm:[1,0,3,2]", "quad_perm:[2,3,0,1]", "row_half_mirror"):
            if len(rs) < 3: a(f"s_nop {2-len(rs)}")
            for r in rs: a(f"{op}_dpp v{r}, v{r}, v{r} {m} row_mask:0xf bank_mask:0xf")
    def lds_sig(off):
        a(f"s_mov_b64 exec, 1\nds_add_u32 v1, v0 offset:{off}\ns_mov_b64 exec, -1")
    def bulk(name, W, We, hooks):
        for t in range(32):
            if t % 4 == 0 and t: a(f"s_add_u32 s33, s33, 16384")
            if We and t >= We: a(f"s_cbranch_vccnz L_{name}{t}\ns_waitcnt vmcnt({We-1})\nL_{name}{t}:")
            if t >= W: a(f"s_waitcnt vmcnt({W-1})")
            a(f"buffer_load_dwordx4 v[{128+4*t}:{131+4*t}], v3, s[36:39], s33 offen offset:{(t%4)*1024} {kvflag}")
            for h in hooks.get(t, []): h()
    def parity():
        a("s_getreg_b32 s3, hwreg(HW_REG_XCC_ID, 0, 1)\ns_mov_b32 vcc_lo, s3\ns_mov_b32 vcc_hi, 0")
    def spin_tail(lbl):
        a(f"s_sub_u32 s35, s35, 1\ns_cmp_lg_u32 s35, 0\ns_cbranch_scc1 {lbl}")
    def lds_wait(name, off, n, sleep):
        a(f"""s_mov_b32 s35, {SPIN*8}
        L_{name}:
        ds_read_b32 v10, v1 offset:{off}
        s_waitcnt lgkmcnt(0)
        v_readfirstlane_b32 s3, v10
        s_cmp_ge_u32 s3, {n}
        s_cbranch_scc1 L_{name}_done""")
        if sleep: a(f"s_sleep {sleep}")
        spin_tail(f"L_{name}")
        a(f"L_{name}_done:")
    def store2(name, ins):
        a(f"s_cbranch_scc1 L_{name}_loc\n{ins} {sf}\ns_branch L_{name}_j\nL_{name}_loc:\n{ins}\nL_{name}_j:")
    def dstamp(j, reg=None):
        if not diag: return
        if reg is None: a("s_memrealtime s[60:61]\ns_waitcnt lgkmcnt(0)")
        a(f"s_mov_b64 exec, 1\nv_mov_b32 v126, s{60 if reg is None else reg}\nv_mov_b32 v127, {4*j}\nglobal_store_dword v127, v126, s[24:25] sc1")
    def write_stamps():
        if not stamps: return
        a("s_waitcnt lgkmcnt(0)\ns_mov_b64 exec, 1")
        a(f"s_lshl_b32 s34, s2, 3\ns_add_u32 s34, s34, s31\ns_lshl_b32 s34, s34, 7\ns_add_u32 s34, s34, {128<<20}\nv_mov_b32 v2, s34")
        for j in range(16):
            a(f"v_mov_b32 v4, s{64+2*j}\nv_mov_b32 v5, s{65+2*j}\nbuffer_store_dwordx2 v[4:5], v2, s[40:43], 0 offen offset:{8*j}")

    a(f"; @launch grid=(256,1,1) block=(512,1,1) lds={LDS}")
    a('.amdgcn_target "amdgcn-amd-amdhsa--gfx950"\n.text')
    a(f".globl {KN}\n.p2align 8\n.type {KN},@function\n{KN}:")
    stamp(0)
    if diag: a("s_memrealtime s[62:63]")
    a(f"""s_load_dwordx16 s[4:19], s[0:1], 0
    s_load_dwordx8 s[20:27], s[0:1], 64
    v_lshrrev_b32 v1, 6, v0
    v_and_b32 v2, 63, v0
    s_cmp_ge_u32 s2, 256
    v_readfirstlane_b32 s31, v1
    s_cbranch_scc1 L_end""")
    if stamps:
        for j in range(1, 16): a(f"s_mov_b64 s[{64+2*j}:{65+2*j}], 0")
    a(f"""s_and_b32 s3, s2, 7
    s_lshr_b32 s28, s2, 3
    s_lshl_b32 s3, s3, 2
    s_and_b32 s29, s28, 3
    s_or_b32 s29, s29, s3
    s_lshr_b32 s30, s28, 2
    v_lshlrev_b32 v3, 4, v2
    s_and_b32 s32, s31, 3
    s_lshl_b32 s33, s29, 3
    s_add_u32 s45, s33, s30
    s_lshl_b32 s33, s45, 5
    s_add_u32 s33, s33, s32
    s_lshl_b32 s33, s33, 12
    s_lshl_b32 s44, s29, 15
    s_lshl_b32 s45, s45, 12
    v_mov_b32 v0, 1
    v_mov_b32 v1, 0
    s_mov_b32 s38, 0x2000000
    s_mov_b32 s39, 0x20000
    s_cmp_lt_u32 s31, 4
    s_cbranch_scc1 L_V""")
    if WKe: parity()
    a("s_waitcnt lgkmcnt(0)\ns_mov_b32 s36, s6\ns_mov_b32 s37, s7")
    stamp(1)
    def qp_loads():
        for u in range(4):
            a(f"s_add_u32 s3, s44, {u*2*REC}\nbuffer_load_dwordx4 v[{64+4*u}:{67+4*u}], v28, s[40:43], s3 offen offset:{QP} {pf}")
        a(f"buffer_load_dword v80, v30, s[40:43], s44 offen offset:{XI} {pf}")
    def h_setup():
        a("s_barrier")
        srd(40, 26, 0x10000000)
        a("""v_lshlrev_b32 v22, 2, v2
        s_and_b32 s3, s29, 3
        s_lshl_b32 s3, s3, 4
        s_lshr_b32 s34, s29, 2
        s_add_u32 s3, s3, s34
        s_lshl_b32 s17, s3, 2
        v_mov_b32 v23, s17
        v_lshrrev_b32 v8, 5, v2
        v_and_b32 v9, 31, v2
        v_lshlrev_b32 v8, 12, v8
        v_lshl_add_u32 v28, v9, 4, v8
        v_lshlrev_b32 v29, 3, v9
        v_lshrrev_b32 v30, 3, v2
        v_lshlrev_b32 v30, 12, v30
        s_mov_b32 s60, 0""")
    def h_chk():
        a("s_cmp_lg_u32 s32, 0\ns_cbranch_scc1 L_h1\ns_load_dword s18, s[24:25], s17 glc\nL_h1:")
    def h_qp():
        a("""s_cmp_lg_u32 s32, 0
        s_cbranch_scc1 L_h2
        s_waitcnt lgkmcnt(0)""")
        stamp(13)
        a("""s_cmp_lt_u32 s18, 8
        s_cbranch_scc1 L_h2
        s_mov_b32 s60, 1""")
        stamp(15)
        qp_loads()
        a("L_h2:")
    hooks = {}
    for t, h in ((min(WK, WKe or WK) - 1, h_setup), (chk_at, h_chk), (gate_at, lambda: lds_sig(F_GATE)), (qp_at, h_qp)): hooks.setdefault(t, []).append(h)
    bulk("k", WK, WKe, hooks)
    stamp(2)
    a(f"""v_lshrrev_b32 v8, 3, v2
    v_and_b32 v9, 7, v2
    s_lshl_b32 s3, s29, 7
    s_lshl_b32 s34, s32, 5
    s_add_u32 s3, s3, s34
    v_bfe_u32 v10, v2, 3, 1
    v_lshl_add_u32 v16, v10, 2, s3
    v_bfe_u32 v10, v2, 4, 1
    v_lshl_add_u32 v16, v10, 1, v16
    v_lshrrev_b32 v10, 5, v2
    v_add_u32 v16, v16, v10
    v_lshlrev_b32 v16, 10, v16
    s_lshl_b32 s46, s30, 7
    v_lshl_add_u32 v12, v9, 4, s46
    v_add_u32 v16, v16, v12
    s_mul_i32 s3, s29, 48
    s_mul_i32 s47, s32, 12
    s_add_u32 s3, s3, s47
    v_lshl_add_u32 v17, v8, 1, s3
    v_lshlrev_b32 v17, 10, v17
    v_add_u32 v17, v17, v12
    v_cmp_gt_u32 vcc, 48, v2
    v_mov_b32 v12, 0x40000000
    v_lshlrev_b32 v19, 12, v9
    v_cndmask_b32 v17, v12, v17, vcc
    v_lshl_add_u32 v18, v8, 1, s47
    v_lshl_add_u32 v18, v18, 2, v19
    v_lshl_add_u32 v20, v9, 2, s34
    v_lshl_add_u32 v20, v20, 2, v30
    v_lshrrev_b32 v8, 5, v2
    s_lshl_b32 s3, s32, 9
    v_lshl_add_u32 v8, v8, 8, s3
    v_lshl_add_u32 v8, v9, 5, v8
    v_and_b32 v9, 16, v2
    v_add_u32 v21, v8, v9
    v_mov_b32 v11, 0
    s_mov_b32 s56, 0x00ff00ff
    s_mov_b32 s57, 0xff00ff00""")
    srd(48, 12, 0x400000)
    srd(52, 20, 1376 * 1024)
    def wo_loads():
        for u in range(2): a(f"buffer_load_dwordx4 v[{112+4*u}:{115+4*u}], v17, s[52:55], 0 offen offset:{1024*u} {wflag}")
        for u in range(4): a(f"s_mov_b32 s3, {8192*u}\nbuffer_load_dwordx4 v[{96+4*u}:{99+4*u}], v16, s[48:51], s3 offen {wflag}")
    if not late_wo: wo_loads()
    a(f"""v_and_b32 v8, 1, v2
    v_mov_b32 v9, 0xffff
    v_mov_b32 v10, 0xffff0000
    v_cmp_eq_u32 vcc, 1, v8
    v_bfe_u32 v8, v2, 1, 2
    s_nop 0
    v_cndmask_b32 v9, v9, v10, vcc""")
    for r in range(4):
        a(f"v_cmp_eq_u32 vcc, {r}, v8\ns_nop 1\nv_cndmask_b32 v{32+r}, 0, v9, vcc")
    a(f"""s_cmp_lg_u32 s32, 0
    s_cbranch_scc1 L_qp_skip
    s_mov_b32 s35, {SPIN}
    s_cmp_lg_u32 s60, 0
    s_cbranch_scc1 L_qp_have
    L_all:
    global_load_dword v8, v23, s[24:25] sc1
    s_waitcnt vmcnt(0)
    v_cmp_gt_u32 vcc, 8, v8
    s_cbranch_vccz L_qp
    s_sleep 16""")
    spin_tail("L_all")
    a("s_mov_b32 s35, 1\nL_qp:")
    qp_loads()
    a(f"s_waitcnt vmcnt(0)\nL_qp_have:\ns_waitcnt vmcnt({0 if late_wo else 6})")
    stamp(12)
    for k in range(4): a(f"v_add_f32 v{64+k}, v{64+k}, v{68+k}\nv_add_f32 v{72+k}, v{72+k}, v{76+k}")
    for k in range(4): a(f"v_add_f32 v{64+k}, v{64+k}, v{72+k}")
    for k in range(4): a(f"v_mov_b32 v{68+k}, v{64+k}")
    a("s_nop 1")
    for k in range(4): a(f"v_permlane32_swap_b32 v{64+k}, v{68+k}")
    for k in range(4): a(f"v_add_f32 v{64+k}, v{64+k}, v{68+k}")
    a("""v_cmp_u_f32 vcc, v64, v65
    v_cmp_u_f32 s[58:59], v66, v67
    s_or_b64 vcc, vcc, s[58:59]
    v_cmp_u_f32 s[58:59], v80, v80
    s_or_b64 vcc, vcc, s[58:59]
    s_cbranch_vccz L_qp_done
    s_sleep 16""")
    spin_tail("L_qp")
    a(f"""L_qp_done:
    v_cvt_pk_bf16_f32 v64, v64, v65
    v_cvt_pk_bf16_f32 v65, v66, v67
    s_getreg_b32 s3, hwreg(HW_REG_XCC_ID, 0, 4)
    v_cmp_ne_u32 vcc, s3, v80
    s_cmp_eq_u64 vcc, 0
    s_cselect_b32 s3, {1 if local else 0}, 0
    v_mov_b32 v66, s3
    ds_write_b32 v1, v66 offset:{L_LOC}
    ds_write_b64 v29, v[64:65] offset:{L_Q}
    s_waitcnt lgkmcnt(0)
    ds_write_b32 v1, v0 offset:{F_Q}
    L_qp_skip:""")
    a("v_and_b32 v9, 15, v2\nv_lshlrev_b32 v9, 4, v9")
    lds_wait("qf", F_Q, 1, 2)
    def gu_loads():
        a(f"buffer_load_dwordx2 v[24:25], v18, s[40:43], s44 offen offset:{GU} {pf}\nbuffer_load_dwordx2 v[26:27], v18, s[40:43], s44 offen offset:{GU+256} {pf}")
    a(f"ds_read_b128 v[4:7], v9 offset:{L_Q}\nds_read_b32 v8, v1 offset:{L_LOC}")
    gu_loads()
    a("s_waitcnt lgkmcnt(0)\nv_readfirstlane_b32 s28, v8")
    stamp(3)
    for grp in range(4):
        ex = 2 if late_wo else 8
        if 24 - 8 * grp < WK: a(f"s_waitcnt vmcnt({24+ex-8*grp})")
        for k in range(4):
            for t in range(8 * grp, 8 * grp + 8):
                if k == 0: a(f"v_dot2_f32_bf16 v{64+t}, v{128+4*t}, v4, 0")
                else: a(f"v_dot2_f32_bf16 v{64+t}, v{128+4*t+k}, v{4+k}, v{64+t}")
    stamp(4)
    a("s_nop 1")
    for t in range(16):
        a(f"v_add_f32_dpp v{64+t}, v{64+t}, v{64+t} row_shl:8 row_mask:0xf bank_mask:0x3")
    for t in range(16):
        a(f"v_add_f32_dpp v{64+t}, v{80+t}, v{80+t} row_shr:8 row_mask:0xf bank_mask:0xc")
    for t in range(8):
        a(f"v_add_f32_dpp v{64+t}, v{64+t}, v{64+t} row_shl:4 row_mask:0xf bank_mask:0x5")
    for t in range(8):
        a(f"v_add_f32_dpp v{64+t}, v{72+t}, v{72+t} row_shr:4 row_mask:0xf bank_mask:0xa")
    a("v_and_b32 v8, 2, v2\nv_cmp_ne_u32 vcc, 0, v8")
    for t in range(8):
        a(f"v_add_f32_dpp v{64+t}, v{64+t}, v{64+t} quad_perm:[2,3,0,1] row_mask:0xf bank_mask:0xf")
    for t in range(4): a(f"v_cndmask_b32 v{64+t}, v{64+t}, v{68+t}, vcc")
    a("v_and_b32 v8, 1, v2\nv_cmp_ne_u32 vcc, 0, v8")
    for t in range(4):
        a(f"v_add_f32_dpp v{64+t}, v{64+t}, v{64+t} quad_perm:[1,0,3,2] row_mask:0xf bank_mask:0xf")
    for t in range(2): a(f"v_cndmask_b32 v{64+t}, v{64+t}, v{66+t}, vcc")
    a(f"""v_cvt_pk_bf16_f32 v8, v64, v65
    v_lshlrev_b32 v64, 16, v8
    v_and_b32 v65, 0xffff0000, v8
    v_mul_f32 v64, 0x3db504f3, v64
    v_mul_f32 v65, 0x3db504f3, v65
    v_cvt_pk_bf16_f32 v8, v64, v65
    v_lshlrev_b32 v64, 16, v8
    v_and_b32 v65, 0xffff0000, v8
    v_max_f32 v12, v64, v65""")
    allred("v_max_f32", 12, 13)
    a(f"""v_sub_f32 v64, v64, v12
    v_sub_f32 v65, v65, v12
    v_mul_f32 v64, {LOG2E}, v64
    v_mul_f32 v65, {LOG2E}, v65
    v_exp_f32 v64, v64
    v_exp_f32 v65, v65
    s_lshl_b32 s3, s32, 8
    v_lshl_add_u32 v9, v2, 2, s3
    v_cvt_pk_bf16_f32 v8, v64, v65
    v_add_f32 v13, v64, v65
    ds_write_b32 v9, v8 offset:{L_P}
    v_mul_f32 v12, {LOG2E}, v12""")
    allred("v_add_f32", 13, 14)
    a(f"""s_lshl_b32 s3, s32, 3
    v_mov_b32 v9, s3
    s_mov_b64 exec, 1
    ds_write_b64 v9, v[12:13] offset:{L_ML}
    s_waitcnt lgkmcnt(0)
    ds_add_rtn_u32 v8, v1, v0 offset:{F_P}
    s_waitcnt lgkmcnt(0)
    v_readfirstlane_b32 s3, v8
    s_mov_b64 exec, 0xff
    s_cmp_lg_u32 s3, 3
    s_cbranch_scc1 L_noml
    ds_read_b128 v[56:59], v1 offset:{L_ML}
    ds_read_b128 v[60:63], v1 offset:{L_ML+16}
    s_waitcnt lgkmcnt(0)
    v_max_f32 v12, v56, v58
    v_max3_f32 v12, v12, v60, v62""")
    for k in range(4): a(f"v_sub_f32 v{56+2*k}, v{56+2*k}, v12")
    for k in range(4): a(f"v_exp_f32 v{56+2*k}, v{56+2*k}")
    a("""v_mul_f32 v13, v56, v57
    v_fmac_f32 v13, v58, v59
    v_fmac_f32 v13, v60, v61
    v_fmac_f32 v13, v62, v63
    s_cmp_lg_u32 s28, 0""")
    store2("ml", f"buffer_store_dwordx4 v[12:15], v3, s[40:43], s45 offen offset:{ML}")
    a("L_noml:\ns_mov_b64 exec, -1")
    stamp(5)
    a(f"s_mov_b32 s35, {SPIN}\ns_waitcnt vmcnt(0)\nL_gu:")
    allred8("v_add_f32", [24, 25, 26, 27])
    a("""v_cmp_u_f32 vcc, v24, v25
    v_cmp_u_f32 s[58:59], v26, v27
    s_or_b64 vcc, vcc, s[58:59]
    s_cbranch_vccz L_gu_done
    s_sleep 16""")
    gu_loads()
    a("s_waitcnt vmcnt(0)")
    spin_tail("L_gu")
    a("L_gu_done:")
    stamp(6)
    a(f"""v_cvt_pk_bf16_f32 v8, v24, v25
    v_cvt_pk_bf16_f32 v9, v26, v27
    v_lshlrev_b32 v24, 16, v8
    v_and_b32 v25, 0xffff0000, v8
    v_lshlrev_b32 v26, 16, v9
    v_and_b32 v27, 0xffff0000, v9
    s_mov_b32 s3, 0x3d372713
    v_mul_f32 v8, v24, v24
    v_mul_f32 v9, v25, v25
    v_fma_f32 v8, v8, s3, 1.0
    v_fma_f32 v9, v9, s3, 1.0
    v_mul_f32 v8, v8, v24
    v_mul_f32 v9, v9, v25
    v_mul_f32 v8, 0xc0135761, v8
    v_mul_f32 v9, 0xc0135761, v9
    v_exp_f32 v8, v8
    v_exp_f32 v9, v9
    s_nop 0
    v_add_f32 v8, 1.0, v8
    v_add_f32 v9, 1.0, v9
    v_rcp_f32 v8, v8
    v_rcp_f32 v9, v9
    s_nop 0
    v_mul_f32 v8, v8, v24
    v_mul_f32 v9, v9, v25
    v_cvt_pk_bf16_f32 v8, v8, v9
    v_lshlrev_b32 v24, 16, v8
    v_and_b32 v25, 0xffff0000, v8
    v_mul_f32 v24, v24, v26
    v_mul_f32 v25, v25, v27
    v_cvt_pk_bf16_f32 v24, v24, v24
    v_cvt_pk_bf16_f32 v25, v25, v25""")
    for u in range(2):
        for r in range(4): a(f"v_and_b32 v{40+4*u+r}, v{24+u}, v{32+r}")
    a(f"""s_lshr_b32 s3, s29, 2
    s_lshl_b32 s3, s3, 2
    s_add_u32 s3, s3, 1
    s_lshl_b32 s34, s30, 2
    s_add_u32 s34, s34, s32
    s_cmp_eq_u32 s3, s34
    s_cselect_b32 s16, 1, 0
    s_cbranch_scc0 L_nofin
    v_lshrrev_b32 v8, 2, v2
    v_and_b32 v9, 3, v2
    v_lshlrev_b32 v14, 15, v8
    v_lshl_add_u32 v14, v9, 4, v14
    s_and_b32 s3, s29, 3
    s_lshl_b32 s3, s3, 6
    s_lshl_b32 s46, s30, 12
    s_add_u32 s46, s46, s3
    s_add_u32 s47, s46, {16*HREC}
    v_lshrrev_b32 v8, 4, v2
    v_lshrrev_b32 v11, 1, v8
    v_and_b32 v8, 1, v8
    v_lshl_add_u32 v11, v8, 1, v11
    v_lshl_add_u32 v11, v9, 2, v11
    s_lshl_b32 s3, s29, 4
    v_add_u32 v11, s3, v11
    v_lshlrev_b32 v11, 1, v11
    global_load_ushort v12, v11, s[4:5]
    v_and_b32 v8, 12, v2
    v_cmp_eq_u32 s[60:61], 0, v8
    v_and_b32 v8, 8, v2
    v_cmp_eq_u32 s[58:59], 0, v8
    s_mov_b32 s35, {SPIN}
    L_all2:
    global_load_dword v8, v22, s[24:25] sc1
    s_waitcnt vmcnt(0)
    v_cmp_gt_u32 vcc, 8, v8
    s_and_b64 vcc, vcc, s[58:59]
    s_cbranch_vccz L_nofin
    s_sleep 16""")
    spin_tail("L_all2")
    a("L_nofin:")
    if late_wo:
        lds_wait("vi", F_VI, 4, 1)
        wo_loads()
    stamp(7)
    if opwait: lds_wait("opw", F_OP, 4, 0)
    stamp(8)
    a(f"s_mov_b32 s35, {SPIN}\nL_op:")
    a(f"buffer_load_dwordx2 v[56:57], v30, s[40:43], s44 offen offset:{ML} {pf}")
    for k in range(4): a(f"buffer_load_dwordx4 v[{64+4*k}:{67+4*k}], v20, s[40:43], s44 offen offset:{OP+OPS*k} {pf}")
    a("""s_waitcnt vmcnt(3)
    v_cmp_u_f32 s[18:19], v57, v67
    s_waitcnt vmcnt(1)
    v_cmp_u_f32 vcc, v71, v75
    s_waitcnt vmcnt(0)
    v_cmp_u_f32 s[58:59], v79, v79
    s_or_b64 s[18:19], s[18:19], vcc
    s_or_b64 exec, s[18:19], s[58:59]
    s_cbranch_execz L_op_have""")
    spin_tail("L_op")
    a("L_op_have:")
    stamp(14)
    a("""s_mov_b64 exec, -1
    v_max_f32_dpp v8, v56, v56 row_ror:8 row_mask:0xf bank_mask:0xf
    v_add_f32 v24, v64, v68
    v_mov_b32 v9, v8
    v_add_f32 v25, v65, v69
    v_add_f32 v26, v66, v70
    v_permlane16_swap_b32 v8, v9
    v_add_f32 v27, v67, v71
    v_max_f32 v8, v8, v9
    v_add_f32 v28, v72, v76
    v_mov_b32 v9, v8
    v_add_f32 v29, v73, v77
    v_add_f32 v58, v74, v78
    v_permlane32_swap_b32 v8, v9
    v_add_f32 v59, v75, v79
    v_max_f32 v8, v8, v9
    v_add_f32 v24, v24, v28
    v_sub_f32 v8, v56, v8
    v_add_f32 v25, v25, v29
    v_exp_f32 v8, v8
    v_add_f32 v26, v26, v58
    v_add_f32 v27, v27, v59
    v_mul_f32 v28, v8, v57
    v_mul_f32 v24, v24, v8
    v_mul_f32 v25, v25, v8
    v_mul_f32 v26, v26, v8
    v_mul_f32 v27, v27, v8
    v_add_f32_dpp v28, v28, v28 row_ror:8 row_mask:0xf bank_mask:0xf
    v_permlane32_swap_b32 v24, v25
    v_mov_b32 v29, v28
    v_permlane32_swap_b32 v26, v27
    v_add_f32 v24, v24, v25
    v_permlane16_swap_b32 v28, v29
    v_add_f32 v26, v26, v27
    v_add_f32 v28, v28, v29
    v_mfma_f32_16x16x32_bf16 v[48:51], v[40:43], v[112:115], 0
    v_mov_b32 v29, v28
    v_permlane16_swap_b32 v24, v26
    v_add_f32 v24, v24, v26
    v_permlane32_swap_b32 v28, v29
    v_add_f32 v28, v28, v29
    v_add_f32_dpp v24, v24, v24 row_ror:8 row_mask:0xf bank_mask:0xf
    v_rcp_f32 v28, v28
    v_mfma_f32_16x16x32_bf16 v[48:51], v[44:47], v[116:119], v[48:51]
    v_mul_f32 v24, v24, v28
    v_cmp_u_f32 vcc, v24, v24
    v_cvt_pk_bf16_f32 v24, v24, v24
    s_cbranch_vccz L_op_done
    s_cmp_eq_u32 s35, 0
    s_cbranch_scc1 L_op_done""")
    spin_tail("L_op")
    a("L_op_done:\ns_nop 0")
    stamp(9)
    for u in range(4): a(f"v_mov_b32_dpp v{60+u}, v24 row_newbcast:{2*u} row_mask:0xf bank_mask:0x3")
    for u in range(4): a(f"v_mov_b32_dpp v{60+u}, v24 row_newbcast:{2*u+1} row_mask:0xf bank_mask:0xc")
    for u in range(4):
        for r in range(4): a(f"v_and_b32 v{64+4*u+r}, v{60+u}, v{32+r}")
        if u: a(f"v_mfma_f32_16x16x32_bf16 v[48:51], v[{60+4*u}:{63+4*u}], v[{92+4*u}:{95+4*u}], v[48:51]")
    a("s_mov_b64 s[58:59], exec\nv_mfma_f32_16x16x32_bf16 v[48:51], v[76:79], v[108:111], v[48:51]")
    a(f"""s_mov_b64 exec, s[56:57]
    s_cmp_eq_u32 s32, 0
    s_nop 5
    ds_write_b128 v21, v[48:51] offset:{L_Y}
    s_mov_b64 exec, -1
    s_waitcnt lgkmcnt(0)
    s_barrier""")
    stamp(10)
    a("s_cbranch_scc0 L_K_other")
    for k in range(4): a(f"ds_read2st64_b32 v[{8+2*k}:{9+2*k}], v22 offset0:{L_Y//256+2*k} offset1:{L_Y//256+2*k+1}")
    a(f"""s_waitcnt lgkmcnt(2)
    v_add_f32 v8, v8, v9
    v_add_f32 v10, v10, v11
    v_add_f32 v8, v8, v10
    s_waitcnt lgkmcnt(0)
    v_add_f32 v12, v12, v13
    v_add_f32 v14, v14, v15
    v_add_f32 v12, v12, v14
    v_add_f32 v8, v8, v12
    buffer_store_dword v8, v22, s[40:43], s45 offen offset:{YP} {sf}""")
    stamp(11)
    write_stamps()
    a(f"""s_endpgm
    L_K_other:
    s_cmp_eq_u32 s16, 0
    s_cbranch_scc1 L_K_end
    s_mov_b32 s35, {SPIN}
    L_yp:
    buffer_load_dwordx4 v[64:67], v14, s[40:43], s46 offen offset:{YP} {pf}
    buffer_load_dwordx4 v[68:71], v14, s[40:43], s47 offen offset:{YP} {pf}
    s_waitcnt vmcnt(0)
    v_cmp_u_f32 vcc, v67, v71
    s_mov_b64 exec, vcc
    s_cbranch_execz L_yp_have""")
    spin_tail("L_yp")
    a("L_yp_have:\ns_mov_b64 exec, -1")
    for k in range(4): a(f"v_add_f32 v{72+k}, v{64+k}, v{68+k}")
    a("""v_lshlrev_b32 v13, 16, v12
    v_permlane32_swap_b32 v72, v73
    v_permlane32_swap_b32 v74, v75
    v_add_f32 v72, v72, v73
    v_add_f32 v74, v74, v75
    s_nop 1
    v_permlane16_swap_b32 v72, v74
    v_add_f32 v72, v72, v74
    s_nop 1
    v_add_f32_dpp v72, v72, v72 row_ror:8 row_mask:0xf bank_mask:0xf
    s_nop 1
    v_add_f32_dpp v72, v72, v72 row_ror:4 row_mask:0xf bank_mask:0xf
    v_add_f32 v72, v72, v13
    v_cmp_u_f32 vcc, v72, v72
    v_cvt_pk_bf16_f32 v72, v72, v72
    s_cbranch_vccz L_yp_done
    s_cmp_eq_u32 s35, 0
    s_cbranch_scc1 L_yp_done""")
    spin_tail("L_yp")
    a(f"""L_yp_done:
    s_mov_b64 exec, s[60:61]
    global_store_short v11, v72, s[22:23] {of}""")
    if diag:
        a("s_cmp_lg_u32 s29, 0\ns_cbranch_scc1 L_end")
        dstamp(8, 62); dstamp(10)
    stamp(12)
    a("L_K_end:")
    write_stamps()
    a("L_end:\ns_endpgm")
    a(f"""L_V:
    v_mov_b32 v4, 0
    v_mov_b32 v5, 0
    v_mov_b32 v6, 0
    v_mov_b32 v7, 0
    s_mov_b64 exec, 3
    ds_write_b128 v3, v[4:7] offset:{L_FLAG}
    s_mov_b64 exec, -1
    s_cmp_lg_u32 s31, 0
    s_cbranch_scc1 L_V_other
    v_lshrrev_b32 v8, 4, v2
    v_and_b32 v9, 15, v2
    s_lshl_b32 s3, s30, 6
    v_lshl_add_u32 v10, v8, 4, s3
    v_lshlrev_b32 v11, 13, v10
    v_lshl_add_u32 v11, v9, 4, v11
    s_lshl_b32 s46, s29, 8
    s_waitcnt lgkmcnt(0)
    global_load_dwordx4 v[4:7], v3, s[4:5]""")
    stamp(1)
    srd(48, 10, 0x400000)
    for t in range(16):
        if t: a(f"s_add_u32 s46, s46, 8192")
        a(f"buffer_load_dwordx4 v[{128+4*t}:{131+4*t}], v11, s[48:51], s46 offen {wflag}")
        if t == 7: a("s_barrier")
    a("""v_and_b32 v12, 7, v9
    s_mul_i32 s3, s29, 6
    v_add_u32 v12, s3, v12
    v_min_u32 v12, 171, v12
    v_mul_u32_u24 v13, 2752, v10
    v_lshl_add_u32 v12, v12, 4, v13
    v_add_u32 v12, 2752, v12
    v_mov_b32 v13, 0
    v_cmp_lt_u32 vcc, 7, v9
    v_mov_b32 v14, s16
    v_mov_b32 v15, s17
    v_mov_b32 v16, s18
    v_mov_b32 v17, s19
    v_cndmask_b32 v14, v14, v16, vcc
    v_cndmask_b32 v15, v15, v17, vcc
    v_lshl_add_u64 v[14:15], v[12:13], 0, v[14:15]
    s_mov_b64 s[52:53], 8256""")
    for t in range(16):
        if t % 3 == 0 and t: a("v_lshl_add_u64 v[14:15], v[14:15], 0, s[52:53]")
        a(f"global_load_dwordx4 v[{192+4*t}:{195+4*t}], v[14:15], off offset:{(t%3-1)*2752} {wflag}")
    stamp(2)
    srd(40, 26, 0x10000000)
    def selectors():
        a("""v_and_b32 v8, 1, v2
        v_mov_b32 v9, 0x0c0c0100
        v_mov_b32 v10, 0x01000c0c
        v_cmp_eq_u32 vcc, 1, v8
        v_mov_b32 v11, 0x0c0c0302
        v_mov_b32 v12, 0x03020c0c
        v_cndmask_b32 v9, v9, v10, vcc
        v_cndmask_b32 v11, v11, v12, vcc
        v_bfe_u32 v8, v2, 1, 3
        v_mov_b32 v10, 0x0c0c0c0c""")
        for r in range(4):
            a(f"v_cmp_eq_u32 vcc, {r}, v8\ns_nop 1\nv_cndmask_b32 v{32+2*r}, v10, v9, vcc\nv_cndmask_b32 v{33+2*r}, v10, v11, vcc")
        a("""v_and_b32 v9, 15, v2
        v_lshlrev_b32 v9, 5, v9
        v_and_b32 v10, 16, v2
        v_add_u32 v31, v9, v10""")
    selectors()
    a("s_waitcnt vmcnt(32)")
    stamp(3)
    for k in range(4):
        a(f"v_lshlrev_b32 v{8+2*k}, 16, v{4+k}\nv_and_b32 v{9+2*k}, 0xffff0000, v{4+k}")
    a("""v_add_f32 v16, v8, v9
    v_add_f32 v17, v10, v11
    v_add_f32 v18, v12, v13
    v_add_f32 v19, v14, v15
    v_add_f32 v16, v16, v17
    v_add_f32 v18, v18, v19
    v_add_f32 v16, v16, v18""")
    allred("v_add_f32", 16, 17)
    a("v_mul_f32 v16, 0x3b000000, v16")
    a("v_sub_f32 v18, v8, v16\nv_mul_f32 v17, v18, v18")
    for k in range(1, 8): a(f"v_sub_f32 v18, v{8+k}, v16\nv_fmac_f32 v17, v18, v18")
    allred("v_add_f32", 17, 18)
    a("""v_mul_f32 v17, 0x3b000000, v17
    v_cvt_pk_bf16_f32 v16, v16, v17
    v_and_b32 v17, 0xffff0000, v16
    v_lshlrev_b32 v16, 16, v16
    v_add_f32 v17, 0x3727c5ac, v17
    v_cvt_pk_bf16_f32 v17, v17, v17
    v_and_b32 v17, 0xffff0000, v17
    v_sqrt_f32 v17, v17
    s_nop 0
    v_cvt_pk_bf16_f32 v17, v17, v17
    v_and_b32 v17, 0xffff0000, v17
    v_rcp_f32 v18, v17""")
    for k in range(4):
        lo, hi = 8 + 2 * k, 9 + 2 * k
        a(f"""v_sub_f32 v{lo}, v{lo}, v16
        v_sub_f32 v{hi}, v{hi}, v16
        v_cvt_pk_bf16_f32 v19, v{lo}, v{hi}
        v_lshlrev_b32 v{lo}, 16, v19
        v_and_b32 v{hi}, 0xffff0000, v19
        v_mul_f32 v19, v{lo}, v18
        v_mul_f32 v20, v{hi}, v18
        v_fma_f32 v{lo}, -v19, v17, v{lo}
        v_fma_f32 v{hi}, -v20, v17, v{hi}
        v_fma_f32 v19, v{lo}, v18, v19
        v_fma_f32 v20, v{hi}, v18, v20
        v_cvt_pk_bf16_f32 v{4+k}, v19, v20""")
    a(f"""ds_write_b128 v3, v[4:7] offset:{L_XN}
    v_lshrrev_b32 v8, 4, v2
    s_lshl_b32 s3, s30, 7
    v_lshl_add_u32 v8, v8, 5, s3
    s_waitcnt lgkmcnt(0)
    ds_read_b128 v[16:19], v8 offset:{L_XN}
    ds_read_b128 v[20:23], v8 offset:{L_XN+16}
    s_waitcnt lgkmcnt(0)""")
    stamp(4)
    for base, D, wait, off in ((128, 48, 16, QP), (192, 52, 2, GU)):
        for t in range(16):
            A = 40 + 4 * (t & 1)
            for r in range(4): a(f"v_perm_b32 v{A+r}, v{16+t//2}, v{16+t//2}, v{32+2*r+(t&1)}")
            if t == 0: a(f"s_nop 0\ns_waitcnt vmcnt({wait})")
            else: a("s_nop 1")
            a(f"v_mfma_f32_16x16x32_bf16 v[{D}:{D+3}], v[{A}:{A+3}], v[{base+4*t}:{base+3+4*t}], {'0' if t == 0 else f'v[{D}:{D+3}]'}")
        if off == QP:
            lds_wait("clr", F_CLR, 1, 1)
            a(f"""s_getreg_b32 s3, hwreg(HW_REG_XCC_ID, 0, 4)
            v_mov_b32 v8, s3
            v_lshlrev_b32 v9, 2, v2
            s_mov_b32 exec_hi, 0
            buffer_store_dword v8, v9, s[40:43], s45 offen offset:{XI} {sf}""")
        a(f"s_mov_b32 exec_hi, 0\ns_nop 6\nbuffer_store_dwordx4 v[{D}:{D+3}], v31, s[40:43], s45 offen offset:{off} {sf}\ns_mov_b32 exec_hi, -1")
        stamp(5 if off == QP else 6)
    a("s_branch L_V_load")
    a("""L_V_other:
    v_mov_b32 v24, -1
    v_mov_b32 v25, -1
    v_mov_b32 v26, -1
    v_mov_b32 v27, -1
    s_waitcnt lgkmcnt(0)""")
    srd(40, 26, 0x10000000)
    a("s_cmp_lg_u32 s31, 1\ns_cbranch_scc1 L_V_idle")
    for k in range(4):
        a(f"buffer_store_dwordx4 v[24:27], v3, s[40:43], s45 offen offset:{1024*k} {sf}")
    a(f"""s_barrier
    s_and_b32 s3, s29, 3
    s_lshl_b32 s3, s3, 4
    s_lshr_b32 s34, s29, 2
    s_add_u32 s3, s3, s34
    s_lshl_b32 s3, s3, 2
    v_mov_b32 v29, s3
    s_mov_b64 exec, 1
    s_waitcnt vmcnt(0)
    global_atomic_add v29, v0, s[24:25] sc1
    ds_write_b32 v1, v0 offset:{F_CLR}
    s_mov_b64 exec, -1""")
    stamp(3)
    a("s_branch L_V_sel\nL_V_idle:\ns_barrier\nL_V_sel:")
    selectors()
    a(f"""L_V_load:
    s_mov_b32 s36, s8
    s_mov_b32 s37, s9
    v_lshrrev_b32 v8, 4, v2
    s_lshl_b32 s3, s32, 8
    v_lshl_add_u32 v28, v8, 6, s3
    s_lshl_b32 s3, s32, 3
    v_mov_b32 v29, s3
    s_mul_i32 s3, s32, {OPS}
    s_add_u32 s46, s45, s3""")
    if WVe: parity()
    lds_wait("gate", F_GATE, 4, 1)
    stamp(8)
    bulk("v", WV, WVe, {wo_at: [lambda: lds_sig(F_VI)]} if late_wo else {})
    stamp(9)
    lds_wait("pw", F_P, 4, 1)
    stamp(10)
    for k in range(4): a(f"ds_read_b128 v[{56+4*k}:{59+4*k}], v28 offset:{L_P+16*k}")
    a(f"""ds_read_b32 v54, v1 offset:{L_LOC}
    ds_read_b32 v52, v29 offset:{L_ML}
    ds_read_b128 v[8:11], v1 offset:{L_ML}
    ds_read_b128 v[12:15], v1 offset:{L_ML+16}
    s_waitcnt lgkmcnt(0)
    v_readfirstlane_b32 s28, v54
    v_max_f32 v8, v8, v10
    v_max3_f32 v8, v8, v12, v14
    v_sub_f32 v52, v52, v8
    v_exp_f32 v52, v52""")
    for t in range(32):
        A = 40 + 4 * (t & 1)
        for r in range(4): a(f"v_perm_b32 v{A+r}, v{56+t//2}, v{56+t//2}, v{32+2*r+(t&1)}")
        a(f"s_nop 0\ns_waitcnt vmcnt({31-t})" if t >= 32 - WV else "s_nop 1")
        a(f"v_mfma_f32_16x16x32_bf16 v[48:51], v[{A}:{A+3}], v[{128+4*t}:{131+4*t}], {'0' if t == 0 else 'v[48:51]'}")
    stamp(11)
    a(f"""s_mov_b32 exec_hi, 0
    s_cmp_lg_u32 s28, 0
    s_nop 5""")
    for k in range(4): a(f"v_mul_f32 v{48+k}, v{48+k}, v52")
    store2("op", f"buffer_store_dwordx4 v[48:51], v31, s[40:43], s46 offen offset:{OP}")
    if opwait: a(f"s_mov_b64 exec, 1\nds_add_u32 v1, v0 offset:{F_OP}")
    write_stamps()
    a("s_endpgm")
    bad = lint(a.L)
    for b in bad[:6]: print("HAZARD need %d have %d:\n   %s\n   %s" % (b[2], b[3], b[0], b[1]), file=sys.stderr)
    return a.text() + footer()

if __name__ == "__main__":
    V = {"v14": {}, "v14_a": dict(WK=8, WV=9), "v14_b": dict(WK=9, WV=10, gate_at=30), "v14_c": dict(late_wo=False), "v14_d": dict(wo_at=26),
         "v14_e": dict(kvflag="", wflag="")}
    for n, kw in V.items():
        open(f"exp/{n}.s", "w").write(gen(**kw))
        open(f"exp/{n}_st.s", "w").write(gen(stamps=True, **kw))
        open(f"exp/{n}_dg.s", "w").write(gen(diag=True, **kw))
```

```python
import sys
from asmlib import *

REC, QREC = 2688, 1280
GU, OP, OPS, ML = 0, 512, 512, 2560
XI, BR = 1024, 1152
RB, YB, QA, QB, EB = 0x100000, 0x200000, 0x300000, 0x380000, 0x400000
L_XN, L_Q, L_FLAG, L_ML, L_P, L_Y, L_GU, L_QI = 0, 1024, 1296, 1536, 2048, 4096, 3072, 6144
L_LOC = L_Q + 256
F_Q, F_GATE, F_P, F_VI, F_CLR, F_OP, F_G = [L_FLAG + 4 * k for k in range(7)]
LDS = 8192
FAST = 24
SPIN = 20000
LOG2E = 0x3fb8aa3b

def gen(stamps=False, kvflag="nt", wflag="nt", WK=7, WV=7, gate_at=28, wo_at=31, qp_at=31, diag=False, pf="sc1", sf="sc1", of="", local=True, abl="", galias=True, v0win=0, csf=""):
    a = Asm()
    HREC = 8 * REC
    def stamp(j):
        if stamps: a(f"s_memrealtime s[{64+2*j}:{65+2*j}]")
    def srd(d, b, n):
        a(f"s_mov_b32 s{d}, s{b}\ns_mov_b32 s{d+1}, s{b+1}\ns_mov_b32 s{d+2}, {n}\ns_mov_b32 s{d+3}, 0x20000")
    def allred16(op, r):
        for k in (8, 4, 2, 1):
            a(f"s_nop 1\n{op}_dpp v{r}, v{r}, v{r} row_ror:{k} row_mask:0xf bank_mask:0xf")
    def allred(op, r, t):
        allred16(op, r)
        for sw in ("v_permlane16_swap_b32", "v_permlane32_swap_b32"):
            a(f"v_mov_b32 v{t}, v{r}\ns_nop 1\n{sw} v{r}, v{t}\n{op} v{r}, v{r}, v{t}")
    def allred8(op, rs):
        for m in ("quad_perm:[1,0,3,2]", "quad_perm:[2,3,0,1]", "row_half_mirror"):
            for r in rs: a(f"{op}_dpp v{r}, v{r}, v{r} {m} row_mask:0xf bank_mask:0xf")
    def lds_sig(off):
        a(f"s_mov_b64 exec, 1\nds_add_u32 v1, v0 offset:{off}\ns_mov_b64 exec, -1")
    def bulk(W, hooks, nowait_after=99):
        for t in range(32):
            if t % 4 == 0 and t: a(f"s_add_u32 s33, s33, 16384")
            if W <= t <= nowait_after: a(f"s_waitcnt vmcnt({W-1})")
            a(f"buffer_load_dwordx4 v[{128+4*t}:{131+4*t}], v3, s[36:39], s33 offen offset:{(t%4)*1024} {kvflag}")
            for h in hooks.get(t, []): h()
    def spin_tail(lbl):
        a(f"s_sub_u32 s35, s35, 1\ns_cmp_lg_u32 s35, 0\ns_cbranch_scc1 {lbl}")
    def lds_wait(name, off, n, sleep):
        a(f"""s_mov_b32 s35, {SPIN*8}
        L_{name}:
        ds_read_b32 v10, v1 offset:{off}
        s_waitcnt lgkmcnt(0)
        v_readfirstlane_b32 s3, v10
        s_cmp_ge_u32 s3, {n}
        s_cbranch_scc1 L_{name}_done""")
        if sleep: a(f"s_sleep {sleep}")
        spin_tail(f"L_{name}")
        a(f"L_{name}_done:")
    def store2(name, ins):
        a(f"s_cbranch_scc1 L_{name}_loc\n{ins} {sf}\ns_branch L_{name}_j\nL_{name}_loc:\n{ins}\nL_{name}_j:")
    def dstamp(j, reg=None):
        if reg is None: a("s_memrealtime s[60:61]\ns_waitcnt lgkmcnt(0)")
        a(f"s_mov_b64 exec, 1\nv_mov_b32 v126, s{60 if reg is None else reg}\nv_mov_b32 v127, {4*j}\nglobal_store_dword v127, v126, s[24:25] sc1")
    def write_stamps():
        if not stamps: return
        a("s_waitcnt lgkmcnt(0)\ns_mov_b64 exec, 1")
        a(f"s_lshl_b32 s34, s2, 3\ns_add_u32 s34, s34, s31\ns_lshl_b32 s34, s34, 7\ns_add_u32 s34, s34, {128<<20}\nv_mov_b32 v2, s34")
        for j in range(16):
            a(f"v_mov_b32 v4, s{64+2*j}\nv_mov_b32 v5, s{65+2*j}\nbuffer_store_dwordx2 v[4:5], v2, s[40:43], 0 offen offset:{8*j}")
    def epoch_load():
        a(f"s_mov_b32 s3, {EB}\ns_load_dword s14, s[26:27], s3")

    a(f"; @launch grid=(256,1,1) block=(512,1,1) lds={LDS}")
    a('.amdgcn_target "amdgcn-amd-amdhsa--gfx950"\n.text')
    a(f".globl {KN}\n.p2align 8\n.type {KN},@function\n{KN}:")
    stamp(0)
    if diag: a("s_memrealtime s[62:63]")
    a(f"""s_load_dwordx16 s[4:19], s[0:1], 0
    s_load_dwordx8 s[20:27], s[0:1], 64
    v_lshrrev_b32 v1, 6, v0
    v_and_b32 v2, 63, v0
    s_cmp_ge_u32 s2, 256
    v_readfirstlane_b32 s31, v1
    s_cbranch_scc1 L_end""")
    if stamps:
        for j in range(1, 16): a(f"s_mov_b64 s[{64+2*j}:{65+2*j}], 0")
    a(f"""s_and_b32 s3, s2, 7
    s_lshr_b32 s28, s2, 3
    s_lshl_b32 s3, s3, 2
    s_and_b32 s29, s28, 3
    s_or_b32 s29, s29, s3
    s_lshr_b32 s30, s28, 2
    v_lshlrev_b32 v3, 4, v2
    s_and_b32 s32, s31, 3
    s_lshl_b32 s47, s29, 3
    s_add_u32 s47, s47, s30
    s_lshl_b32 s33, s47, 5
    s_add_u32 s33, s33, s32
    s_lshl_b32 s33, s33, 12
    s_mul_i32 s44, s29, {HREC}
    s_mul_i32 s45, s47, {REC}
    v_mov_b32 v0, 1
    v_mov_b32 v1, 0
    s_mov_b32 s38, 0x2000000
    s_mov_b32 s39, 0x20000
    s_mov_b32 s42, 0x10000000
    s_mov_b32 s43, 0x20000
    s_cmp_lt_u32 s31, 4
    s_cbranch_scc1 L_V""")
    a(f"""v_mov_b32 v4, -1
    v_mov_b32 v5, -1
    v_mov_b32 v6, -1
    v_mov_b32 v7, -1
    s_lshl_b32 s3, s32, 10
    s_add_u32 s34, s3, s45
    v_add_u32 v8, s3, v3
    v_cmp_gt_u32 vcc, {REC}, v8
    s_cmp_eq_u32 s32, 3
    s_waitcnt lgkmcnt(0)
    s_mov_b32 s36, s6
    s_mov_b32 s37, s7
    s_mov_b32 s40, s26
    s_mov_b32 s41, s27""")
    stamp(1)
    a(f"""s_cbranch_scc1 L_clr_j
    s_mov_b64 exec, vcc
    buffer_store_dwordx4 v[4:7], v3, s[40:43], s34 offen
    s_mov_b64 exec, -1
    L_clr_j:""")
    def h_setup():
        epoch_load()
        a(f"""s_lshl_b32 s15, s47, 9
        s_add_u32 s15, s15, {YB}
        s_barrier
        v_lshlrev_b32 v22, 2, v2
        v_lshrrev_b32 v8, 3, v2
        v_mul_u32_u24 v30, {REC}, v8
        v_mul_u32_u24 v28, {QREC}, v8
        s_mul_i32 s46, s29, {8*QREC}
        s_add_u32 s46, s46, {QA}
        s_waitcnt vmcnt({WK})""")
        lds_sig(F_CLR)
    def qp_loads():
        for u in range(8):
            if u % 3 == 0: a(f"s_add_u32 s3, s46, {u*QREC}")
            a(f"buffer_load_dwordx4 v[{64+4*u}:{67+4*u}], v3, s[40:43], s3 offen offset:{(u%3)*QREC} {pf}")
        a(f"buffer_load_dwordx2 v[96:97], v28, s[40:43], s46 offen offset:{XI} {pf}")
    def h_qp():
        a("s_cmp_lg_u32 s32, 0\ns_cbranch_scc1 L_noq")
        if "q" not in abl: qp_loads()
        a("L_noq:")
    hooks = {}
    for t, h in ((WK - 1, h_setup), (gate_at, lambda: lds_sig(F_GATE)), (qp_at, h_qp)): hooks.setdefault(t, []).append(h)
    bulk(WK, hooks, qp_at)
    stamp(2)
    a(f"""v_lshrrev_b32 v8, 3, v2
    v_and_b32 v9, 7, v2
    s_lshl_b32 s3, s29, 7
    s_lshl_b32 s34, s32, 5
    s_add_u32 s3, s3, s34
    v_bfe_u32 v10, v2, 3, 1
    v_lshl_add_u32 v16, v10, 2, s3
    v_bfe_u32 v10, v2, 4, 1
    v_lshl_add_u32 v16, v10, 1, v16
    v_lshrrev_b32 v10, 5, v2
    v_add_u32 v16, v16, v10
    v_lshlrev_b32 v16, 10, v16
    s_lshl_b32 s3, s30, 7
    v_lshl_add_u32 v12, v9, 4, s3
    v_add_u32 v16, v16, v12
    s_mul_i32 s3, s29, 48
    s_mul_i32 s17, s32, 12
    s_add_u32 s3, s3, s17
    v_lshl_add_u32 v17, v8, 1, s3
    v_lshlrev_b32 v17, 10, v17
    v_add_u32 v17, v17, v12
    v_cmp_gt_u32 vcc, 48, v2
    v_mov_b32 v12, 0x40000000
    v_mul_u32_u24 v19, {REC}, v9
    v_cndmask_b32 v17, v12, v17, vcc
    v_lshl_add_u32 v18, v8, 1, s17
    v_lshl_add_u32 v18, v18, 2, v19
    v_lshl_add_u32 v20, v9, 2, s34
    v_lshl_add_u32 v20, v20, 2, v30
    v_lshrrev_b32 v8, 5, v2
    s_lshl_b32 s3, s32, 9
    v_lshl_add_u32 v8, v8, 8, s3
    v_lshl_add_u32 v8, v9, 5, v8
    v_and_b32 v9, 16, v2
    v_add_u32 v21, v8, v9
    v_mov_b32 v11, 0
    s_mov_b32 s56, 0x00ff00ff
    s_mov_b32 s57, 0xff00ff00""")
    srd(48, 12, 0x400000)
    srd(52, 20, 1376 * 1024)
    a(f"""v_and_b32 v8, 1, v2
    v_mov_b32 v9, 0xffff
    v_mov_b32 v10, 0xffff0000
    v_cmp_eq_u32 vcc, 1, v8
    v_bfe_u32 v8, v2, 1, 2
    s_waitcnt lgkmcnt(0)
    s_add_u32 s14, s14, 1
    v_cndmask_b32 v9, v9, v10, vcc""")
    for r in range(4):
        a(f"v_cmp_eq_u32 vcc, {r}, v8\ns_nop 1\nv_cndmask_b32 v{32+r}, 0, v9, vcc")
    a(f"""s_cmp_lg_u32 s32, 0
    s_cbranch_scc1 L_qp_skip
    s_mov_b32 s35, {SPIN}
    s_mov_b32 s28, 1
    L_qp:
    s_waitcnt vmcnt(0)""")
    stamp(12)
    tags = [65 + 2 * k for k in range(16)] + [97]
    a(f"v_min_u32 v8, v{tags[0]}, v{tags[0]}\nv_max_u32 v9, v{tags[0]}, v{tags[0]}")
    for k in range(1, 17, 2):
        a(f"v_min3_u32 v8, v8, v{tags[k]}, v{tags[k+1]}\nv_max3_u32 v9, v9, v{tags[k]}, v{tags[k+1]}")
    def republish(name):
        a(f"s_cmp_eq_u32 s28, 0\ns_cbranch_scc1 L_{name}_x\ns_mov_b32 s28, 0\ns_mov_b32 s18, s35")
        lds_wait(name, F_G, 1, 1)
        a(f"""s_mov_b32 s35, s18
        ds_read_b128 v[100:103], v3 offset:{L_QI}
        ds_read_b128 v[104:107], v3 offset:{L_QI+XI}
        s_mul_i32 s3, s47, {QREC}
        s_add_u32 s3, s3, {QB}
        s_waitcnt lgkmcnt(0)
        buffer_store_dwordx4 v[100:103], v3, s[40:43], s3 offen {sf}
        s_mov_b64 exec, 0xff
        buffer_store_dwordx4 v[104:107], v3, s[40:43], s3 offen offset:{XI} {sf}
        s_mov_b64 exec, -1
        L_{name}_x:""")
    a(f"""v_cmp_ne_u32 vcc, s14, v8
    v_cmp_ne_u32 s[58:59], s14, v9
    s_or_b64 vcc, vcc, s[58:59]
    s_cbranch_vccz L_qp_done
    s_sleep 8
    s_cmp_gt_u32 s35, {SPIN-FAST}
    s_cbranch_scc1 L_qp_again""")
    republish("rp1")
    a(f"s_xor_b32 s46, s46, {QA ^ QB}\nL_qp_again:")
    qp_loads()
    spin_tail("L_qp")
    a("s_waitcnt vmcnt(0)\nL_qp_done:")
    for k in range(4): a(f"v_add_f32 v{64+8*k}, v{64+8*k}, v{68+8*k}\nv_add_f32 v{66+8*k}, v{66+8*k}, v{70+8*k}")
    a(f"""v_add_f32 v64, v64, v72
    v_add_f32 v66, v66, v74
    v_add_f32 v80, v80, v88
    v_add_f32 v82, v82, v90
    v_add_f32 v64, v64, v80
    v_add_f32 v66, v66, v82
    s_getreg_b32 s3, hwreg(HW_REG_XCC_ID, 0, 4)
    v_cmp_ne_u32 vcc, s3, v96
    v_cvt_pk_bf16_f32 v64, v64, v66
    s_cmp_eq_u64 vcc, 0
    s_cselect_b32 s19, {1 if local else 0}, 0
    s_cmp_lg_u32 s19, 0
    s_cbranch_scc1 L_loc""")
    republish("rp2")
    a(f"s_or_b32 s46, s46, {QA ^ QB}\ns_add_u32 s3, s45, {RB}")
    for k in range(2): a(f"buffer_store_dwordx4 v[4:7], v3, s[40:43], s3 offen offset:{1024*k} {sf}")
    a(f"""s_mov_b32 exec_hi, 0xff
    buffer_store_dwordx4 v[4:7], v3, s[40:43], s3 offen offset:2048 {sf}
    s_mul_i32 s3, s47, {QREC}
    s_add_u32 s3, s3, {QB}
    v_mov_b32 v8, s14
    v_mov_b32 v9, s14
    s_mov_b64 exec, 1
    s_waitcnt vmcnt(0)
    buffer_store_dwordx2 v[8:9], v1, s[40:43], s3 offen offset:{BR} {sf}
    s_mov_b64 exec, -1
    s_mov_b32 s35, {SPIN}
    L_br:
    buffer_load_dwordx2 v[8:9], v28, s[40:43], s46 offen offset:{BR} {pf}
    s_waitcnt vmcnt(0)
    v_cmp_ne_u32 vcc, s14, v9
    s_cbranch_vccz L_loc
    s_sleep 8""")
    spin_tail("L_br")
    a(f"""L_loc:
    v_mov_b32 v66, s19
    ds_write_b32 v1, v66 offset:{L_LOC}
    ds_write_b32 v22, v64 offset:{L_Q}
    s_waitcnt lgkmcnt(0)
    ds_write_b32 v1, v0 offset:{F_Q}
    L_qp_skip:""")
    a("v_and_b32 v9, 15, v2\nv_lshlrev_b32 v9, 4, v9")
    lds_wait("qf", F_Q, 1, 2)
    a(f"""ds_read_b128 v[4:7], v9 offset:{L_Q}
    ds_read_b32 v8, v1 offset:{L_LOC}
    s_waitcnt lgkmcnt(0)
    v_readfirstlane_b32 s28, v8
    s_cmp_lg_u32 s28, 0
    s_cselect_b32 s3, 0, {RB}
    s_add_u32 s44, s44, s3
    s_add_u32 s45, s45, s3""")
    stamp(3)
    n_pub = 0
    a("s_cmp_lg_u32 s32, 1\ns_cbranch_scc1 L_nogu")
    lds_wait("gw", F_G, 1, 1)
    a(f"s_mov_b32 exec_hi, 0\nds_read_b128 v[12:15], v3 offset:{L_GU}\ns_cmp_lg_u32 s28, 0\ns_waitcnt vmcnt(0) lgkmcnt(0)")
    store2("gu", f"buffer_store_dwordx4 v[12:15], v3, s[40:43], s45 offen offset:{GU}")
    a("s_mov_b32 exec_hi, -1\ns_branch L_gupub\nL_nogu:\ns_waitcnt vmcnt(0)\nL_gupub:")
    for grp in range(4):
        for k in range(4):
            for t in range(8 * grp, 8 * grp + 8):
                if k == 0: a(f"v_dot2_f32_bf16 v{64+t}, v{128+4*t}, v4, 0")
                else: a(f"v_dot2_f32_bf16 v{64+t}, v{128+4*t+k}, v{4+k}, v{64+t}")
    stamp(4)
    a("s_nop 1")
    for t in range(16):
        a(f"v_add_f32_dpp v{64+t}, v{64+t}, v{64+t} row_shl:8 row_mask:0xf bank_mask:0x3")
    for t in range(16):
        a(f"v_add_f32_dpp v{64+t}, v{80+t}, v{80+t} row_shr:8 row_mask:0xf bank_mask:0xc")
    for t in range(8):
        a(f"v_add_f32_dpp v{64+t}, v{64+t}, v{64+t} row_shl:4 row_mask:0xf bank_mask:0x5")
    for t in range(8):
        a(f"v_add_f32_dpp v{64+t}, v{72+t}, v{72+t} row_shr:4 row_mask:0xf bank_mask:0xa")
    a("v_and_b32 v8, 2, v2\nv_cmp_ne_u32 vcc, 0, v8")
    for t in range(8):
        a(f"v_add_f32_dpp v{64+t}, v{64+t}, v{64+t} quad_perm:[2,3,0,1] row_mask:0xf bank_mask:0xf")
    for t in range(4): a(f"v_cndmask_b32 v{64+t}, v{64+t}, v{68+t}, vcc")
    a("v_and_b32 v8, 1, v2\nv_cmp_ne_u32 vcc, 0, v8")
    for t in range(4):
        a(f"v_add_f32_dpp v{64+t}, v{64+t}, v{64+t} quad_perm:[1,0,3,2] row_mask:0xf bank_mask:0xf")
    for t in range(2): a(f"v_cndmask_b32 v{64+t}, v{64+t}, v{66+t}, vcc")
    a(f"""v_cvt_pk_bf16_f32 v8, v64, v65
    v_lshlrev_b32 v64, 16, v8
    v_and_b32 v65, 0xffff0000, v8
    v_mul_f32 v64, 0x3db504f3, v64
    v_mul_f32 v65, 0x3db504f3, v65
    v_cvt_pk_bf16_f32 v8, v64, v65
    v_lshlrev_b32 v64, 16, v8
    v_and_b32 v65, 0xffff0000, v8
    v_max_f32 v12, v64, v65""")
    allred("v_max_f32", 12, 13)
    a(f"""v_sub_f32 v64, v64, v12
    v_sub_f32 v65, v65, v12
    v_mul_f32 v64, {LOG2E}, v64
    v_mul_f32 v65, {LOG2E}, v65
    v_exp_f32 v64, v64
    v_exp_f32 v65, v65
    s_lshl_b32 s3, s32, 8
    v_lshl_add_u32 v9, v2, 2, s3
    v_cvt_pk_bf16_f32 v8, v64, v65
    v_add_f32 v13, v64, v65
    ds_write_b32 v9, v8 offset:{L_P}
    v_mul_f32 v12, {LOG2E}, v12""")
    allred("v_add_f32", 13, 14)
    a(f"""s_lshl_b32 s3, s32, 3
    v_mov_b32 v9, s3
    s_mov_b64 exec, 1
    ds_write_b64 v9, v[12:13] offset:{L_ML}
    s_waitcnt lgkmcnt(0)
    ds_add_rtn_u32 v8, v1, v0 offset:{F_P}
    s_waitcnt lgkmcnt(0)
    v_readfirstlane_b32 s3, v8
    s_mov_b64 exec, 0xff
    s_cmp_lg_u32 s3, 3
    s_cbranch_scc1 L_noml
    ds_read_b128 v[56:59], v1 offset:{L_ML}
    ds_read_b128 v[60:63], v1 offset:{L_ML+16}
    s_waitcnt lgkmcnt(0)
    v_max_f32 v12, v56, v58
    v_max3_f32 v12, v12, v60, v62""")
    for k in range(4): a(f"v_sub_f32 v{56+2*k}, v{56+2*k}, v12")
    for k in range(4): a(f"v_exp_f32 v{56+2*k}, v{56+2*k}")
    a("""v_mul_f32 v13, v56, v57
    v_fmac_f32 v13, v58, v59
    v_fmac_f32 v13, v60, v61
    v_fmac_f32 v13, v62, v63
    s_cmp_lg_u32 s28, 0""")
    store2("ml", f"buffer_store_dwordx4 v[12:15], v3, s[40:43], s45 offen offset:{ML}")
    a("L_noml:\ns_mov_b64 exec, -1")
    stamp(5)
    if "t" in abl: a("s_branch L_K_end")
    a(f"""s_lshr_b32 s3, s29, 2
    s_sub_u32 s34, s32, 1
    s_cmp_lt_u32 s34, 2
    s_cselect_b32 s16, s30, 99
    s_cmp_eq_u32 s3, s16
    s_cselect_b32 s16, 1, 0
    s_cbranch_scc0 L_nofin
    v_lshrrev_b32 v8, 2, v2
    v_and_b32 v9, 3, v2
    v_lshlrev_b32 v14, 12, v8
    v_lshl_add_u32 v14, v9, 4, v14
    s_and_b32 s3, s29, 3
    s_lshl_b32 s3, s3, 1
    s_add_u32 s3, s3, s34
    s_lshl_b32 s3, s3, 6
    s_lshl_b32 s46, s30, 9
    s_add_u32 s46, s46, s3
    s_add_u32 s46, s46, {YB}
    s_add_u32 s47, s46, {16*4096}
    v_lshrrev_b32 v11, 5, v2
    v_lshl_add_u32 v11, v9, 1, v11
    s_lshl_b32 s3, s29, 1
    s_add_u32 s3, s3, s34
    s_lshl_b32 s3, s3, 3
    v_add_u32 v11, s3, v11
    v_lshlrev_b32 v11, 1, v11
    global_load_ushort v12, v11, s[4:5]
    v_and_b32 v8, 28, v2
    v_cmp_eq_u32 s[60:61], 0, v8
    L_nofin:""")
    stamp(6)
    lds_wait("vi", F_VI, 4, 1)
    stamp(7)
    def gu_loads():
        a(f"buffer_load_dwordx2 v[24:25], v18, s[40:43], s44 offen offset:{GU} {pf}\nbuffer_load_dwordx2 v[26:27], v18, s[40:43], s44 offen offset:{GU+256} {pf}")
    gu_loads()
    for u in range(2): a(f"buffer_load_dwordx4 v[{112+4*u}:{115+4*u}], v17, s[52:55], 0 offen offset:{1024*u} {wflag}")
    for u in range(4): a(f"s_mov_b32 s3, {8192*u}\nbuffer_load_dwordx4 v[{96+4*u}:{99+4*u}], v16, s[48:51], s3 offen {wflag}")
    a(f"s_mov_b32 s35, {SPIN}\ns_waitcnt vmcnt(6)\nL_gu:")
    allred8("v_add_f32", [24, 25, 26, 27])
    a("""v_cmp_u_f32 vcc, v24, v25
    v_cmp_u_f32 s[58:59], v26, v27
    s_or_b64 vcc, vcc, s[58:59]
    s_cbranch_vccz L_gu_done""")
    gu_loads()
    a("s_waitcnt vmcnt(0)")
    spin_tail("L_gu")
    a(f"""L_gu_done:
    v_cvt_pk_bf16_f32 v8, v24, v25
    v_cvt_pk_bf16_f32 v9, v26, v27
    v_lshlrev_b32 v24, 16, v8
    v_and_b32 v25, 0xffff0000, v8
    v_lshlrev_b32 v26, 16, v9
    v_and_b32 v27, 0xffff0000, v9
    s_mov_b32 s3, 0x3d372713
    v_mul_f32 v8, v24, v24
    v_mul_f32 v9, v25, v25
    v_fma_f32 v8, v8, s3, 1.0
    v_fma_f32 v9, v9, s3, 1.0
    v_mul_f32 v8, v8, v24
    v_mul_f32 v9, v9, v25
    v_mul_f32 v8, 0xc0135761, v8
    v_mul_f32 v9, 0xc0135761, v9
    v_exp_f32 v8, v8
    v_exp_f32 v9, v9
    s_nop 0
    v_add_f32 v8, 1.0, v8
    v_add_f32 v9, 1.0, v9
    v_rcp_f32 v8, v8
    v_rcp_f32 v9, v9
    s_nop 0
    v_mul_f32 v8, v8, v24
    v_mul_f32 v9, v9, v25
    v_cvt_pk_bf16_f32 v8, v8, v9
    v_lshlrev_b32 v24, 16, v8
    v_and_b32 v25, 0xffff0000, v8
    v_mul_f32 v24, v24, v26
    v_mul_f32 v25, v25, v27
    v_cvt_pk_bf16_f32 v24, v24, v24
    v_cvt_pk_bf16_f32 v25, v25, v25""")
    for u in range(2):
        for r in range(4): a(f"v_and_b32 v{40+4*u+r}, v{24+u}, v{32+r}")
    a("v_mov_b32 v23, s14\nv_lshlrev_b32 v19, 3, v2")
    stamp(13)
    lds_wait("opw", F_OP, 4, 0)
    stamp(8)
    a(f"s_mov_b32 s35, {SPIN}\nL_op:")
    a(f"buffer_load_dwordx2 v[56:57], v30, s[40:43], s44 offen offset:{ML} {pf}")
    for k in range(4): a(f"buffer_load_dwordx4 v[{64+4*k}:{67+4*k}], v20, s[40:43], s44 offen offset:{OP+OPS*k} {pf}")
    a("""s_waitcnt vmcnt(3)
    v_cmp_u_f32 s[18:19], v57, v67
    s_waitcnt vmcnt(1)
    v_cmp_u_f32 vcc, v71, v75
    s_waitcnt vmcnt(0)
    v_cmp_u_f32 s[58:59], v79, v79
    s_or_b64 s[18:19], s[18:19], vcc
    s_or_b64 exec, s[18:19], s[58:59]
    s_cbranch_execz L_op_have""")
    spin_tail("L_op")
    a("L_op_have:")
    stamp(14)
    a("""s_mov_b64 exec, -1
    v_max_f32_dpp v8, v56, v56 row_ror:8 row_mask:0xf bank_mask:0xf
    v_add_f32 v24, v64, v68
    v_mov_b32 v9, v8
    v_add_f32 v25, v65, v69
    v_add_f32 v26, v66, v70
    v_permlane16_swap_b32 v8, v9
    v_add_f32 v27, v67, v71
    v_max_f32 v8, v8, v9
    v_add_f32 v28, v72, v76
    v_mov_b32 v9, v8
    v_add_f32 v29, v73, v77
    v_add_f32 v58, v74, v78
    v_permlane32_swap_b32 v8, v9
    v_add_f32 v59, v75, v79
    v_max_f32 v8, v8, v9
    v_add_f32 v24, v24, v28
    v_sub_f32 v8, v56, v8
    v_add_f32 v25, v25, v29
    v_exp_f32 v8, v8
    v_add_f32 v26, v26, v58
    v_add_f32 v27, v27, v59
    v_mul_f32 v28, v8, v57
    v_mul_f32 v24, v24, v8
    v_mul_f32 v25, v25, v8
    v_mul_f32 v26, v26, v8
    v_mul_f32 v27, v27, v8
    v_add_f32_dpp v28, v28, v28 row_ror:8 row_mask:0xf bank_mask:0xf
    v_permlane32_swap_b32 v24, v25
    v_mov_b32 v29, v28
    v_permlane32_swap_b32 v26, v27
    v_add_f32 v24, v24, v25
    v_permlane16_swap_b32 v28, v29
    v_add_f32 v26, v26, v27
    v_add_f32 v28, v28, v29
    v_mfma_f32_16x16x32_bf16 v[48:51], v[40:43], v[112:115], 0
    v_mov_b32 v29, v28
    v_permlane16_swap_b32 v24, v26
    v_add_f32 v24, v24, v26
    v_permlane32_swap_b32 v28, v29
    v_add_f32 v28, v28, v29
    v_add_f32_dpp v24, v24, v24 row_ror:8 row_mask:0xf bank_mask:0xf
    v_rcp_f32 v28, v28
    v_mfma_f32_16x16x32_bf16 v[48:51], v[44:47], v[116:119], v[48:51]
    v_mul_f32 v24, v24, v28
    v_cmp_u_f32 vcc, v24, v24
    v_cvt_pk_bf16_f32 v24, v24, v24
    s_cbranch_vccz L_op_done
    s_cmp_eq_u32 s35, 0
    s_cbranch_scc1 L_op_done""")
    spin_tail("L_op")
    a("L_op_done:\ns_nop 0")
    stamp(9)
    for u in range(4): a(f"v_mov_b32_dpp v{60+u}, v24 row_newbcast:{2*u} row_mask:0xf bank_mask:0x3")
    for u in range(4): a(f"v_mov_b32_dpp v{60+u}, v24 row_newbcast:{2*u+1} row_mask:0xf bank_mask:0xc")
    for u in range(4):
        for r in range(4): a(f"v_and_b32 v{64+4*u+r}, v{60+u}, v{32+r}")
        if u: a(f"v_mfma_f32_16x16x32_bf16 v[48:51], v[{60+4*u}:{63+4*u}], v[{92+4*u}:{95+4*u}], v[48:51]")
    a(f"""s_cmp_eq_u32 s32, 0
    v_mfma_f32_16x16x32_bf16 v[48:51], v[76:79], v[108:111], v[48:51]
    s_mov_b64 exec, s[56:57]
    s_nop 6
    ds_write_b128 v21, v[48:51] offset:{L_Y}
    s_mov_b64 exec, -1
    s_waitcnt lgkmcnt(0)
    s_barrier""")
    stamp(10)
    a("s_cbranch_scc0 L_K_other")
    for k in range(4): a(f"ds_read2st64_b32 v[{8+2*k}:{9+2*k}], v22 offset0:{L_Y//256+2*k} offset1:{L_Y//256+2*k+1}")
    a(f"""s_waitcnt lgkmcnt(2)
    v_add_f32 v8, v8, v9
    v_add_f32 v10, v10, v11
    v_add_f32 v8, v8, v10
    s_waitcnt lgkmcnt(0)
    v_add_f32 v12, v12, v13
    v_add_f32 v14, v14, v15
    v_add_f32 v12, v12, v14
    v_add_f32 v22, v8, v12
    buffer_store_dwordx2 v[22:23], v19, s[40:43], s15 offen {sf}""")
    stamp(11)
    write_stamps()
    a(f"""s_endpgm
    L_K_other:
    s_cmp_eq_u32 s16, 0
    s_cbranch_scc1 L_K_end
    s_mov_b32 s35, {SPIN}
    L_yp:
    buffer_load_dwordx4 v[64:67], v14, s[40:43], s46 offen {pf}
    buffer_load_dwordx4 v[68:71], v14, s[40:43], s47 offen {pf}
    s_waitcnt vmcnt(1)
    v_cmp_ne_u32 vcc, s14, v65
    v_cmp_ne_u32 s[58:59], s14, v67
    s_waitcnt vmcnt(0)
    v_cmp_ne_u32 s[18:19], s14, v69
    v_cmp_ne_u32 s[56:57], s14, v71
    s_or_b64 vcc, vcc, s[58:59]
    s_or_b64 s[18:19], s[18:19], s[56:57]
    s_or_b64 exec, vcc, s[18:19]
    s_cbranch_execz L_yp_have""")
    spin_tail("L_yp")
    a("""L_yp_have:
    s_mov_b64 exec, -1
    v_add_f32 v72, v64, v68
    v_add_f32 v73, v66, v70
    v_lshlrev_b32 v13, 16, v12
    s_nop 0
    v_permlane32_swap_b32 v72, v73
    v_add_f32 v72, v72, v73
    v_mov_b32 v73, v72
    s_nop 1
    v_permlane16_swap_b32 v72, v73
    v_add_f32 v72, v72, v73
    s_nop 1
    v_add_f32_dpp v72, v72, v72 row_ror:8 row_mask:0xf bank_mask:0xf
    s_nop 1
    v_add_f32_dpp v72, v72, v72 row_ror:4 row_mask:0xf bank_mask:0xf
    v_add_f32 v72, v72, v13
    v_cvt_pk_bf16_f32 v72, v72, v72""")
    a(f"""L_yp_done:
    s_mov_b64 exec, s[60:61]
    global_store_short v11, v72, s[22:23] {of}""")
    stamp(12)
    a(f"""s_lshl_b32 s3, s29, 2
    s_add_u32 s3, s3, s32
    s_cmp_lg_u32 s3, 1
    s_cbranch_scc1 L_K_end
    s_mov_b64 exec, 1
    v_mov_b32 v8, s14
    s_mov_b32 s3, {EB}
    buffer_store_dword v8, v1, s[40:43], s3 offen""")
    if diag:
        dstamp(8, 62); dstamp(10)
    a("L_K_end:")
    write_stamps()
    a("L_end:\ns_endpgm")
    a(f"""L_V:
    v_mov_b32 v4, 0
    v_mov_b32 v5, 0
    v_mov_b32 v6, 0
    v_mov_b32 v7, 0
    s_mov_b64 exec, 3
    ds_write_b128 v3, v[4:7] offset:{L_FLAG}
    s_mov_b64 exec, -1
    s_cmp_lg_u32 s31, 0
    s_cbranch_scc1 L_V_other
    v_lshrrev_b32 v8, 4, v2
    v_and_b32 v9, 15, v2
    s_lshl_b32 s3, s30, 6
    v_lshl_add_u32 v10, v8, 4, s3
    v_lshlrev_b32 v11, 13, v10
    v_lshl_add_u32 v11, v9, 4, v11
    s_lshl_b32 s46, s29, 8
    s_waitcnt lgkmcnt(0)
    global_load_dwordx4 v[4:7], v3, s[4:5]
    s_barrier""")
    stamp(1)
    srd(48, 10, 0x400000)
    for t in range(16):
        if t: a(f"s_add_u32 s46, s46, 8192")
        if v0win and t >= v0win: a(f"s_waitcnt vmcnt({v0win-1})")
        if "w" not in abl: a(f"buffer_load_dwordx4 v[{128+4*t}:{131+4*t}], v11, s[48:51], s46 offen {wflag}")
    epoch_load()
    a(f"""v_and_b32 v12, 7, v9
    {"v_min_u32 v12, 5, v12" if galias else ""}
    s_mul_i32 s3, s29, 6
    v_add_u32 v12, s3, v12
    v_min_u32 v12, 171, v12
    v_mul_u32_u24 v13, 2752, v10
    v_lshl_add_u32 v12, v12, 4, v13
    v_add_u32 v12, 2752, v12
    v_mov_b32 v13, 0
    v_cmp_lt_u32 vcc, 7, v9
    v_mov_b32 v14, s16
    v_mov_b32 v15, s17
    v_mov_b32 v16, s18
    v_mov_b32 v17, s19
    v_cndmask_b32 v14, v14, v16, vcc
    v_cndmask_b32 v15, v15, v17, vcc
    v_lshl_add_u64 v[14:15], v[12:13], 0, v[14:15]
    s_mov_b64 s[52:53], 8256""")
    for t in range(16):
        if t % 3 == 0 and t: a("v_lshl_add_u64 v[14:15], v[14:15], 0, s[52:53]")
        if v0win: a(f"s_waitcnt vmcnt({v0win-1})")
        if "g" not in abl: a(f"global_load_dwordx4 v[{192+4*t}:{195+4*t}], v[14:15], off offset:{(t%3-1)*2752} {wflag}")
    stamp(2)
    def selectors():
        a("""s_mov_b32 s40, s26
        s_mov_b32 s41, s27
        v_and_b32 v8, 1, v2
        v_mov_b32 v9, 0x0c0c0100
        v_mov_b32 v10, 0x01000c0c
        v_cmp_eq_u32 vcc, 1, v8
        v_mov_b32 v11, 0x0c0c0302
        v_mov_b32 v12, 0x03020c0c
        v_cndmask_b32 v9, v9, v10, vcc
        v_cndmask_b32 v11, v11, v12, vcc
        v_bfe_u32 v8, v2, 1, 3
        v_mov_b32 v10, 0x0c0c0c0c""")
        for r in range(4):
            a(f"v_cmp_eq_u32 vcc, {r}, v8\ns_nop 1\nv_cndmask_b32 v{32+2*r}, v10, v9, vcc\nv_cndmask_b32 v{33+2*r}, v10, v11, vcc")
        a("""v_and_b32 v9, 15, v2
        v_lshlrev_b32 v9, 5, v9
        v_and_b32 v10, 16, v2
        v_add_u32 v31, v9, v10""")
    selectors()
    a("s_waitcnt vmcnt(32)")
    stamp(3)
    for k in range(4):
        a(f"v_lshlrev_b32 v{8+2*k}, 16, v{4+k}\nv_and_b32 v{9+2*k}, 0xffff0000, v{4+k}")
    a("""v_add_f32 v16, v8, v9
    v_add_f32 v17, v10, v11
    v_add_f32 v18, v12, v13
    v_add_f32 v19, v14, v15
    v_add_f32 v16, v16, v17
    v_add_f32 v18, v18, v19
    v_add_f32 v16, v16, v18""")
    allred("v_add_f32", 16, 17)
    a("v_mul_f32 v16, 0x3b000000, v16")
    a("v_sub_f32 v18, v8, v16\nv_mul_f32 v17, v18, v18")
    for k in range(1, 8): a(f"v_sub_f32 v18, v{8+k}, v16\nv_fmac_f32 v17, v18, v18")
    allred("v_add_f32", 17, 18)
    a("""v_mul_f32 v17, 0x3b000000, v17
    v_cvt_pk_bf16_f32 v16, v16, v17
    v_and_b32 v17, 0xffff0000, v16
    v_lshlrev_b32 v16, 16, v16
    v_add_f32 v17, 0x3727c5ac, v17
    v_cvt_pk_bf16_f32 v17, v17, v17
    v_and_b32 v17, 0xffff0000, v17
    v_sqrt_f32 v17, v17
    s_nop 0
    v_cvt_pk_bf16_f32 v17, v17, v17
    v_and_b32 v17, 0xffff0000, v17
    v_rcp_f32 v18, v17""")
    for k in range(4):
        lo, hi = 8 + 2 * k, 9 + 2 * k
        a(f"""v_sub_f32 v{lo}, v{lo}, v16
        v_sub_f32 v{hi}, v{hi}, v16
        v_cvt_pk_bf16_f32 v19, v{lo}, v{hi}
        v_lshlrev_b32 v{lo}, 16, v19
        v_and_b32 v{hi}, 0xffff0000, v19
        v_mul_f32 v19, v{lo}, v18
        v_mul_f32 v20, v{hi}, v18
        v_fma_f32 v{lo}, -v19, v17, v{lo}
        v_fma_f32 v{hi}, -v20, v17, v{hi}
        v_fma_f32 v19, v{lo}, v18, v19
        v_fma_f32 v20, v{hi}, v18, v20
        v_cvt_pk_bf16_f32 v{4+k}, v19, v20""")
    a(f"""ds_write_b128 v3, v[4:7] offset:{L_XN}
    v_lshrrev_b32 v8, 4, v2
    s_lshl_b32 s3, s30, 7
    v_lshl_add_u32 v8, v8, 5, s3
    s_waitcnt lgkmcnt(0)
    ds_read_b128 v[16:19], v8 offset:{L_XN}
    ds_read_b128 v[20:23], v8 offset:{L_XN+16}
    s_add_u32 s14, s14, 1
    s_mul_i32 s46, s47, {QREC}
    s_add_u32 s46, s46, {QA}
    s_getreg_b32 s3, hwreg(HW_REG_XCC_ID, 0, 4)
    v_mov_b32 v57, s14
    v_mov_b32 v59, s14
    v_mov_b32 v61, s14
    v_mov_b32 v63, s14
    v_mov_b32 v24, s3
    v_cmp_gt_u32 vcc, 32, v2
    v_lshlrev_b32 v25, 1, v31
    v_add_u32 v26, 512, v3
    s_waitcnt lgkmcnt(0)
    v_cndmask_b32 v26, v26, v25, vcc""")
    stamp(4)
    def chain(base, D, wait):
        for t in range(16):
            A = 40 + 4 * (t & 1)
            for r in range(4): a(f"v_perm_b32 v{A+r}, v{16+t//2}, v{16+t//2}, v{32+2*r+(t&1)}")
            if t == 0: a(f"s_nop 0\ns_waitcnt vmcnt({wait})")
            else: a("s_nop 1")
            a(f"v_mfma_f32_16x16x32_bf16 v[{D}:{D+3}], v[{A}:{A+3}], v[{base+4*t}:{base+3+4*t}], {'0' if t == 0 else f'v[{D}:{D+3}]'}")
    chain(128, 48, 16)
    lds_wait("clr", F_CLR, 4, 1)
    a(f"""s_nop 1
    v_cndmask_b32 v56, v24, v48, vcc
    v_cndmask_b32 v58, v24, v49, vcc
    v_mov_b32 v60, v50
    v_mov_b32 v62, v51
    s_mov_b32 exec_hi, 0xff
    buffer_store_dwordx4 v[56:59], v26, s[40:43], s46 offen
    ds_write_b128 v26, v[56:59] offset:{L_QI}
    s_mov_b32 exec_hi, 0
    buffer_store_dwordx4 v[60:63], v25, s[40:43], s46 offen offset:16
    ds_write_b128 v25, v[60:63] offset:{L_QI+16}
    s_mov_b32 exec_hi, -1""")
    stamp(5)
    chain(192, 52, 2)
    a(f"""s_mov_b32 exec_hi, 0
    s_nop 6
    ds_write_b128 v31, v[52:55] offset:{L_GU}
    s_mov_b32 exec_hi, -1
    s_waitcnt lgkmcnt(0)
    ds_write_b32 v1, v0 offset:{F_G}""")
    stamp(6)
    a("s_branch L_V_load\nL_V_other:\ns_waitcnt lgkmcnt(0)\ns_barrier")
    selectors()
    a(f"""L_V_load:
    s_mov_b32 s36, s8
    s_mov_b32 s37, s9
    v_lshrrev_b32 v8, 4, v2
    s_lshl_b32 s3, s32, 8
    v_lshl_add_u32 v28, v8, 6, s3
    s_lshl_b32 s3, s32, 3
    v_mov_b32 v29, s3
    s_mul_i32 s3, s32, {OPS}
    s_add_u32 s46, s45, s3""")
    lds_wait("gate", F_GATE, 4, 1)
    stamp(8)
    bulk(WV, {wo_at: [lambda: lds_sig(F_VI)]})
    stamp(9)
    lds_wait("pw", F_P, 4, 1)
    stamp(10)
    for k in range(4): a(f"ds_read_b128 v[{56+4*k}:{59+4*k}], v28 offset:{L_P+16*k}")
    a(f"""ds_read_b32 v54, v1 offset:{L_LOC}
    ds_read_b32 v52, v29 offset:{L_ML}
    ds_read_b128 v[8:11], v1 offset:{L_ML}
    ds_read_b128 v[12:15], v1 offset:{L_ML+16}
    s_waitcnt lgkmcnt(0)
    v_readfirstlane_b32 s28, v54
    v_max_f32 v8, v8, v10
    v_max3_f32 v8, v8, v12, v14
    v_sub_f32 v52, v52, v8
    v_exp_f32 v52, v52
    s_cmp_lg_u32 s28, 0
    s_cselect_b32 s3, 0, {RB}
    s_add_u32 s46, s46, s3""")
    for t in range(32):
        A = 40 + 4 * (t & 1)
        for r in range(4): a(f"v_perm_b32 v{A+r}, v{56+t//2}, v{56+t//2}, v{32+2*r+(t&1)}")
        a(f"s_nop 0\ns_waitcnt vmcnt({31-t})" if t >= 32 - WV else "s_nop 1")
        a(f"v_mfma_f32_16x16x32_bf16 v[48:51], v[{A}:{A+3}], v[{128+4*t}:{131+4*t}], {'0' if t == 0 else 'v[48:51]'}")
    stamp(11)
    a("s_mov_b32 exec_hi, 0\ns_cmp_lg_u32 s28, 0\ns_nop 5")
    for k in range(4): a(f"v_mul_f32 v{48+k}, v{48+k}, v52")
    store2("op", f"buffer_store_dwordx4 v[48:51], v31, s[40:43], s46 offen offset:{OP}")
    a(f"s_mov_b64 exec, 1\nds_add_u32 v1, v0 offset:{F_OP}")
    write_stamps()
    a("s_endpgm")
    bad = lint(a.L)
    for b in bad[:6]: print("HAZARD need %d have %d:\n   %s\n   %s" % (b[2], b[3], b[0], b[1]), file=sys.stderr)
    return a.text() + footer()

if __name__ == "__main__":
    V = {"v17": {}, "v17_a": dict(qp_at=26), "v17_b": dict(WK=8, WV=9), "v17_c": dict(local=False), "v17_d": dict(wo_at=26), "v17_e": dict(qp_at=28, WK=8, WV=8), "v17_t": dict(abl="t")}
    for n, kw in V.items():
        open(f"exp/{n}.s", "w").write(gen(**kw))
        open(f"exp/{n}_st.s", "w").write(gen(stamps=True, **kw))
        open(f"exp/{n}_dg.s", "w").write(gen(diag=True, **kw))
```

```python
import sys
from asmlib import *

REC, QREC = 2688, 1280
GU, OP, OPS, ML = 0, 512, 512, 2560
XI, BR = 1024, 1152
RB, YB, QA, QB, EB = 0x100000, 0x200000, 0x300000, 0x380000, 0x400000
L_XN, L_Q, L_FLAG, L_ML, L_P, L_Y, L_GU, L_QI = 0, 1024, 1296, 1536, 2048, 4096, 3072, 6144
L_LOC = L_Q + 256
F_Q, F_GATE, F_P, F_VI, F_CLR, F_OP, F_G, F_PL = [L_FLAG + 4 * k for k in range(8)]
LDS = 8192
FAST = 24
SPIN = 200000
LOG2E = 0x3fb8aa3b

def gen(stamps=False, kvflag="nt", wflag="nt", WK=7, WV=7, gate_at=28, wo_at=31, qp_at=31, diag=False, pf="sc1", sf="sc1", of="", local=True, abl="", galias=True, v0win=0, csf="", wowait=False, swap=False, prio=0, wd_early=False, kprio=0, psleep=0, woflag=None, ysleep=0, buddy=0, WV2=None, ramp=12, WK2=None, kramp=12, wide=False, ne=8, nl=3):
    a = Asm()
    HREC = 8 * REC
    def stamp(j):
        if stamps: a(f"s_memrealtime s[{64+2*j}:{65+2*j}]")
    def srd(d, b, n):
        a(f"s_mov_b32 s{d}, s{b}\ns_mov_b32 s{d+1}, s{b+1}\ns_mov_b32 s{d+2}, {n}\ns_mov_b32 s{d+3}, 0x20000")
    def allred16(op, r):
        for k in (8, 4, 2, 1):
            a(f"s_nop 1\n{op}_dpp v{r}, v{r}, v{r} row_ror:{k} row_mask:0xf bank_mask:0xf")
    def allred(op, r, t):
        allred16(op, r)
        for sw in ("v_permlane16_swap_b32", "v_permlane32_swap_b32"):
            a(f"v_mov_b32 v{t}, v{r}\ns_nop 1\n{sw} v{r}, v{t}\n{op} v{r}, v{r}, v{t}")
    def allred8(op, rs):
        for m in ("quad_perm:[1,0,3,2]", "quad_perm:[2,3,0,1]", "row_half_mirror"):
            for r in rs: a(f"{op}_dpp v{r}, v{r}, v{r} {m} row_mask:0xf bank_mask:0xf")
    def lds_sig(off):
        a(f"s_mov_b64 exec, 1\nds_add_u32 v1, v0 offset:{off}\ns_mov_b64 exec, -1")
    def bulk(W1, hooks, nowait_after=99, W2=None, at=99):
        for t in range(32):
            W = W2 if W2 and t >= at else W1
            if t % 4 == 0 and t: a(f"s_add_u32 s33, s33, 16384")
            if W <= t <= nowait_after: a(f"s_waitcnt vmcnt({W-1})")
            a(f"buffer_load_dwordx4 v[{128+4*t}:{131+4*t}], v3, s[36:39], s33 offen offset:{(t%4)*1024} {kvflag}")
            for h in hooks.get(t, []): h()
    def spin_tail(lbl):
        a(f"s_sub_u32 s35, s35, 1\ns_cmp_lg_u32 s35, 0\ns_cbranch_scc1 {lbl}")
    def lds_wait(name, off, n, sleep):
        a(f"""s_mov_b32 s35, {SPIN*8}
        L_{name}:
        ds_read_b32 v10, v1 offset:{off}
        s_waitcnt lgkmcnt(0)
        v_readfirstlane_b32 s3, v10
        s_cmp_ge_u32 s3, {n}
        s_cbranch_scc1 L_{name}_done""")
        if sleep: a(f"s_sleep {sleep}")
        spin_tail(f"L_{name}")
        a(f"L_{name}_done:")
    def store2(name, ins):
        a(f"s_cbranch_scc1 L_{name}_loc\n{ins} {sf}\ns_branch L_{name}_j\nL_{name}_loc:\n{ins}\nL_{name}_j:")
    def dstamp(j, reg=None):
        if reg is None: a("s_memrealtime s[60:61]\ns_waitcnt lgkmcnt(0)")
        a(f"s_mov_b64 exec, 1\nv_mov_b32 v126, s{60 if reg is None else reg}\nv_mov_b32 v127, {4*j}\nglobal_store_dword v127, v126, s[24:25] sc1")
    def write_stamps():
        if not stamps: return
        a("s_waitcnt lgkmcnt(0)\ns_mov_b64 exec, 1")
        a(f"s_lshl_b32 s34, s2, 3\ns_add_u32 s34, s34, s31\ns_lshl_b32 s34, s34, 7\ns_add_u32 s34, s34, {128<<20}\nv_mov_b32 v2, s34")
        for j in range(16):
            a(f"v_mov_b32 v4, s{64+2*j}\nv_mov_b32 v5, s{65+2*j}\nbuffer_store_dwordx2 v[4:5], v2, s[40:43], 0 offen offset:{8*j}")
    def epoch_load():
        a(f"s_mov_b32 s3, {EB}\ns_load_dword s14, s[26:27], s3")

    def ffn_split():
        a(f"""s_mul_i32 s61, s29, {ne}
        s_mul_i32 s3, s29, {nl}
        s_add_u32 s3, s3, {16*(ne-nl)}
        s_cmp_lt_u32 s29, 16
        s_cselect_b32 s61, s61, s3
        s_cselect_b32 s60, {ne}, {nl}""")
    def w_addr(sreg):
        a(f"""v_lshrrev_b32 v8, 3, v2
    v_and_b32 v9, 7, v2
    s_lshl_b32 s3, s29, 7
    s_lshl_b32 s34, s32, 5
    s_add_u32 s3, s3, s34
    v_bfe_u32 v10, v2, 3, 1
    v_lshl_add_u32 v16, v10, 2, s3
    v_bfe_u32 v10, v2, 4, 1
    v_lshl_add_u32 v16, v10, 1, v16
    v_lshrrev_b32 v10, 5, v2
    v_add_u32 v16, v16, v10
    v_lshlrev_b32 v16, 10, v16
    s_lshl_b32 s3, {sreg}, 7
    v_lshl_add_u32 v12, v9, 4, s3
    v_add_u32 v16, v16, v12
    s_lshl_b32 s16, s60, 1
    s_mul_i32 s17, s32, s16
    s_lshl_b32 s3, s61, 3
    s_add_u32 s3, s3, s17
    v_bfe_u32 v10, v2, 4, 1
    v_lshlrev_b32 v19, 2, v10
    v_bfe_u32 v10, v2, 3, 1
    v_lshl_add_u32 v19, v10, 1, v19
    v_lshrrev_b32 v10, 5, v2
    v_add_u32 v10, v19, v10
    v_add_u32 v17, s3, v10
    v_lshlrev_b32 v17, 10, v17
    v_add_u32 v17, v17, v12
    v_add_u32 v19, 8192, v17
    v_mov_b32 v12, 0x40000000
    v_cmp_gt_u32 vcc, s16, v10
    v_add_u32 v10, 8, v10
    v_cmp_gt_u32 s[58:59], s16, v10
    v_cndmask_b32 v17, v12, v17, vcc
    s_nop 0
    v_cndmask_b32 v19, v12, v19, s[58:59]""")
        srd(48, 12, 0x400000)
        srd(52, 20, 1376 * 1024)
    wf = wflag if woflag is None else woflag
    wd = f"buffer_load_dwordx4 v[112:115], v17, s[52:55], 0 offen {wf}\nbuffer_load_dwordx4 v[116:119], v19, s[52:55], 0 offen {wf}"
    def wo_loads():
        for u in range(4): a(f"s_mov_b32 s3, {(1024 if wide else 8192)*u}\nbuffer_load_dwordx4 v[{96+4*u}:{99+4*u}], v16, s[48:51], s3 offen {wf}")

    a(f"; @launch grid=(256,1,1) block=(512,1,1) lds={LDS}")
    a('.amdgcn_target "amdgcn-amd-amdhsa--gfx950"\n.text')
    a(f".globl {KN}\n.p2align 8\n.type {KN},@function\n{KN}:")
    stamp(0)
    if diag: a("s_memrealtime s[62:63]")
    a(f"""s_load_dwordx16 s[4:19], s[0:1], 0
    s_load_dwordx8 s[20:27], s[0:1], 64
    v_lshrrev_b32 v1, 6, v0
    v_and_b32 v2, 63, v0
    s_cmp_ge_u32 s2, 256
    v_readfirstlane_b32 s31, v1
    s_cbranch_scc1 L_end""")
    if stamps:
        for j in range(1, 16): a(f"s_mov_b64 s[{64+2*j}:{65+2*j}], 0")
    a(f"""s_and_b32 s3, s2, 7
    s_lshr_b32 s28, s2, 3
    s_lshl_b32 s3, s3, 2
    s_and_b32 s29, s28, 3
    s_or_b32 s29, s29, s3
    s_lshr_b32 s30, s28, 2
    v_lshlrev_b32 v3, 4, v2
    s_and_b32 s32, s31, 3
    s_lshl_b32 s47, s29, 3
    s_add_u32 s47, s47, s30
    s_lshl_b32 s33, s47, 5
    s_add_u32 s33, s33, s32
    s_lshl_b32 s33, s33, 12
    s_mul_i32 s44, s29, {HREC}
    s_mul_i32 s45, s47, {REC}
    v_mov_b32 v0, 1
    v_mov_b32 v1, 0
    s_mov_b32 s38, 0x2000000
    s_mov_b32 s39, 0x20000
    s_mov_b32 s42, 0x10000000
    s_mov_b32 s43, 0x20000
    s_cmp_lt_u32 s31, 4
    s_cbranch_scc{0 if swap else 1} L_V""")
    if swap and stamps: a("s_xor_b32 s31, s31, 4")
    a(f"""v_mov_b32 v4, -1
    v_mov_b32 v5, -1
    v_mov_b32 v6, -1
    v_mov_b32 v7, -1
    s_lshl_b32 s3, s32, 10
    s_add_u32 s34, s3, s45
    v_add_u32 v8, s3, v3
    v_cmp_gt_u32 vcc, {REC}, v8
    s_cmp_eq_u32 s32, 3
    s_waitcnt lgkmcnt(0)
    s_mov_b32 s36, s6
    s_mov_b32 s37, s7
    s_mov_b32 s40, s26
    s_mov_b32 s41, s27""")
    stamp(1)
    a(f"""s_cbranch_scc1 L_clr_j
    s_mov_b64 exec, vcc
    buffer_store_dwordx4 v[4:7], v3, s[40:43], s34 offen
    s_mov_b64 exec, -1
    L_clr_j:""")
    def h_setup():
        epoch_load()
        a(f"""s_lshl_b32 s15, s47, 9
        s_add_u32 s15, s15, {YB}
        s_barrier
        v_lshlrev_b32 v22, 2, v2
        v_lshrrev_b32 v8, 3, v2
        v_mul_u32_u24 v30, {REC}, v8
        v_mul_u32_u24 v28, {QREC}, v8
        s_mul_i32 s46, s29, {8*QREC}
        s_add_u32 s46, s46, {QA}
        s_waitcnt vmcnt({WK})""")
        lds_sig(F_CLR)
    def qp_loads():
        for u in range(8):
            if u % 3 == 0: a(f"s_add_u32 s3, s46, {u*QREC}")
            a(f"buffer_load_dwordx4 v[{64+4*u}:{67+4*u}], v3, s[40:43], s3 offen offset:{(u%3)*QREC} {pf}")
        a(f"buffer_load_dwordx2 v[96:97], v28, s[40:43], s46 offen offset:{XI} {pf}")
    def h_qp():
        a("s_cmp_lg_u32 s32, 0\ns_cbranch_scc1 L_noq")
        if "q" not in abl: qp_loads()
        a("L_noq:")
    hooks = {}
    for t, h in ((WK - 1, h_setup), (gate_at, lambda: lds_sig(F_GATE)), (qp_at, h_qp)): hooks.setdefault(t, []).append(h)
    bulk(WK, hooks, qp_at, WK2, kramp)
    stamp(2)
    if kprio: a(f"s_setprio {kprio}")
    ffn_split()
    w_addr('s30')
    a(f"""v_lshl_add_u32 v18, v9, 1, s17
    v_lshl_add_u32 v18, v18, 2, v30
    v_lshl_add_u32 v20, v9, 2, s34
    v_lshl_add_u32 v20, v20, 2, v30
    v_lshrrev_b32 v8, 5, v2
    s_lshl_b32 s3, s32, 9
    v_lshl_add_u32 v8, v8, 8, s3
    v_lshl_add_u32 v8, v9, 5, v8
    v_and_b32 v9, 16, v2
    v_add_u32 v21, v8, v9
    v_mov_b32 v11, 0
    s_mov_b32 s56, 0x00ff00ff
    s_mov_b32 s57, 0xff00ff00""")
    a(f"""v_and_b32 v8, 1, v2
    v_mov_b32 v9, 0xffff
    v_mov_b32 v10, 0xffff0000
    v_cmp_eq_u32 vcc, 1, v8
    v_bfe_u32 v8, v2, 1, 2
    s_waitcnt lgkmcnt(0)
    s_add_u32 s14, s14, 1
    v_cndmask_b32 v9, v9, v10, vcc""")
    for r in range(4):
        a(f"v_cmp_eq_u32 vcc, {r}, v8\ns_nop 1\nv_cndmask_b32 v{32+r}, 0, v9, vcc")
    a(f"""s_cmp_lg_u32 s32, 0
    s_cbranch_scc1 L_qp_skip
    s_mov_b32 s35, {SPIN}
    s_mov_b32 s28, 1
    L_qp:
    s_waitcnt vmcnt(0)""")
    stamp(12)
    tags = [65 + 2 * k for k in range(16)] + [97]
    a(f"v_min_u32 v8, v{tags[0]}, v{tags[0]}\nv_max_u32 v9, v{tags[0]}, v{tags[0]}")
    for k in range(1, 17, 2):
        a(f"v_min3_u32 v8, v8, v{tags[k]}, v{tags[k+1]}\nv_max3_u32 v9, v9, v{tags[k]}, v{tags[k+1]}")
    def republish(name):
        a(f"s_cmp_eq_u32 s28, 0\ns_cbranch_scc1 L_{name}_x\ns_mov_b32 s28, 0\ns_mov_b32 s18, s35")
        lds_wait(name, F_G, 1, 1)
        a(f"""s_mov_b32 s35, s18
        ds_read_b128 v[100:103], v3 offset:{L_QI}
        ds_read_b128 v[104:107], v3 offset:{L_QI+XI}
        s_mul_i32 s3, s47, {QREC}
        s_add_u32 s3, s3, {QB}
        s_waitcnt lgkmcnt(0)
        buffer_store_dwordx4 v[100:103], v3, s[40:43], s3 offen {sf}
        s_mov_b64 exec, 0xff
        buffer_store_dwordx4 v[104:107], v3, s[40:43], s3 offen offset:{XI} {sf}
        s_mov_b64 exec, -1
        L_{name}_x:""")
    a(f"""v_cmp_ne_u32 vcc, s14, v8
    v_cmp_ne_u32 s[58:59], s14, v9
    s_or_b64 vcc, vcc, s[58:59]
    s_cbranch_vccz L_qp_done
    s_sleep 8
    s_cmp_gt_u32 s35, {SPIN-FAST}
    s_cbranch_scc1 L_qp_again""")
    republish("rp1")
    a(f"s_xor_b32 s46, s46, {QA ^ QB}\nL_qp_again:")
    qp_loads()
    spin_tail("L_qp")
    a("s_waitcnt vmcnt(0)\nL_qp_done:")
    for k in range(4): a(f"v_add_f32 v{64+8*k}, v{64+8*k}, v{68+8*k}\nv_add_f32 v{66+8*k}, v{66+8*k}, v{70+8*k}")
    a(f"""v_add_f32 v64, v64, v72
    v_add_f32 v66, v66, v74
    v_add_f32 v80, v80, v88
    v_add_f32 v82, v82, v90
    v_add_f32 v64, v64, v80
    v_add_f32 v66, v66, v82
    s_getreg_b32 s3, hwreg(HW_REG_XCC_ID, 0, 4)
    v_cmp_ne_u32 vcc, s3, v96
    v_cvt_pk_bf16_f32 v64, v64, v66
    s_cmp_eq_u64 vcc, 0
    s_cselect_b32 s19, {1 if local else 0}, 0
    s_cmp_lg_u32 s19, 0
    s_cbranch_scc1 L_loc""")
    republish("rp2")
    a(f"s_or_b32 s46, s46, {QA ^ QB}\ns_add_u32 s3, s45, {RB}")
    for k in range(2): a(f"buffer_store_dwordx4 v[4:7], v3, s[40:43], s3 offen offset:{1024*k} {sf}")
    a(f"""s_mov_b32 exec_hi, 0xff
    buffer_store_dwordx4 v[4:7], v3, s[40:43], s3 offen offset:2048 {sf}
    s_mul_i32 s3, s47, {QREC}
    s_add_u32 s3, s3, {QB}
    v_mov_b32 v8, s14
    v_mov_b32 v9, s14
    s_mov_b64 exec, 1
    s_waitcnt vmcnt(0)
    buffer_store_dwordx2 v[8:9], v1, s[40:43], s3 offen offset:{BR} {sf}
    s_mov_b64 exec, -1
    s_mov_b32 s35, {SPIN}
    L_br:
    buffer_load_dwordx2 v[8:9], v28, s[40:43], s46 offen offset:{BR} {pf}
    s_waitcnt vmcnt(0)
    v_cmp_ne_u32 vcc, s14, v9
    s_cbranch_vccz L_loc
    s_sleep 8""")
    spin_tail("L_br")
    a(f"""L_loc:
    v_mov_b32 v66, s19
    ds_write_b32 v1, v66 offset:{L_LOC}
    ds_write_b32 v22, v64 offset:{L_Q}
    s_waitcnt lgkmcnt(0)
    ds_write_b32 v1, v0 offset:{F_Q}
    L_qp_skip:""")
    a("v_and_b32 v9, 15, v2\nv_lshlrev_b32 v9, 4, v9")
    lds_wait("qf", F_Q, 1, 2)
    a(f"""ds_read_b128 v[4:7], v9 offset:{L_Q}
    ds_read_b32 v8, v1 offset:{L_LOC}
    s_waitcnt lgkmcnt(0)
    v_readfirstlane_b32 s28, v8
    s_cmp_lg_u32 s28, 0
    s_cselect_b32 s3, 0, {RB}
    s_add_u32 s44, s44, s3
    s_add_u32 s45, s45, s3""")
    stamp(3)
    n_pub = 0
    a(f"s_lshl_b32 s3, s28, 2\ns_add_u32 s3, s3, s32\ns_cmp_lg_u32 s3, 1\ns_cbranch_scc1 L_nogu")
    lds_wait("gw", F_G, 1, 1)
    a(f"""s_mov_b32 exec_hi, 0
    ds_read_b128 v[12:15], v3 offset:{L_GU}
    s_waitcnt lgkmcnt(0)
    buffer_store_dwordx4 v[12:15], v3, s[40:43], s45 offen offset:{GU} {sf}
    s_mov_b32 exec_hi, -1
    L_nogu:""")
    def gu_loads():
        a(f"buffer_load_dwordx2 v[24:25], v18, s[40:43], s44 offen offset:{GU} {pf}\nbuffer_load_dwordx2 v[26:27], v18, s[40:43], s44 offen offset:{GU+256} {pf}")
    gu_loads()
    a("s_waitcnt vmcnt(2)")
    for grp in range(4):
        for k in range(4):
            for t in range(8 * grp, 8 * grp + 8):
                if k == 0: a(f"v_dot2_f32_bf16 v{64+t}, v{128+4*t}, v4, 0")
                else: a(f"v_dot2_f32_bf16 v{64+t}, v{128+4*t+k}, v{4+k}, v{64+t}")
    stamp(4)
    a("s_nop 1")
    for t in range(16):
        a(f"v_add_f32_dpp v{64+t}, v{64+t}, v{64+t} row_shl:8 row_mask:0xf bank_mask:0x3")
    for t in range(16):
        a(f"v_add_f32_dpp v{64+t}, v{80+t}, v{80+t} row_shr:8 row_mask:0xf bank_mask:0xc")
    for t in range(8):
        a(f"v_add_f32_dpp v{64+t}, v{64+t}, v{64+t} row_shl:4 row_mask:0xf bank_mask:0x5")
    for t in range(8):
        a(f"v_add_f32_dpp v{64+t}, v{72+t}, v{72+t} row_shr:4 row_mask:0xf bank_mask:0xa")
    a("v_and_b32 v8, 2, v2\nv_cmp_ne_u32 vcc, 0, v8")
    for t in range(8):
        a(f"v_add_f32_dpp v{64+t}, v{64+t}, v{64+t} quad_perm:[2,3,0,1] row_mask:0xf bank_mask:0xf")
    for t in range(4): a(f"v_cndmask_b32 v{64+t}, v{64+t}, v{68+t}, vcc")
    a("v_and_b32 v8, 1, v2\nv_cmp_ne_u32 vcc, 0, v8")
    for t in range(4):
        a(f"v_add_f32_dpp v{64+t}, v{64+t}, v{64+t} quad_perm:[1,0,3,2] row_mask:0xf bank_mask:0xf")
    for t in range(2): a(f"v_cndmask_b32 v{64+t}, v{64+t}, v{66+t}, vcc")
    a(f"""v_cvt_pk_bf16_f32 v8, v64, v65
    v_lshlrev_b32 v64, 16, v8
    v_and_b32 v65, 0xffff0000, v8
    v_mul_f32 v64, 0x3db504f3, v64
    v_mul_f32 v65, 0x3db504f3, v65
    v_cvt_pk_bf16_f32 v8, v64, v65
    v_lshlrev_b32 v64, 16, v8
    v_and_b32 v65, 0xffff0000, v8
    v_max_f32 v12, v64, v65""")
    allred("v_max_f32", 12, 13)
    a(f"""v_sub_f32 v64, v64, v12
    v_sub_f32 v65, v65, v12
    v_mul_f32 v64, {LOG2E}, v64
    v_mul_f32 v65, {LOG2E}, v65
    v_exp_f32 v64, v64
    v_exp_f32 v65, v65
    s_lshl_b32 s3, s32, 8
    v_lshl_add_u32 v9, v2, 2, s3
    v_cvt_pk_bf16_f32 v8, v64, v65
    v_add_f32 v13, v64, v65
    ds_write_b32 v9, v8 offset:{L_P}
    v_mul_f32 v12, {LOG2E}, v12""")
    allred("v_add_f32", 13, 14)
    a(f"""s_lshl_b32 s3, s32, 3
    v_mov_b32 v9, s3
    s_mov_b64 exec, 1
    ds_write_b64 v9, v[12:13] offset:{L_ML}
    s_waitcnt lgkmcnt(0)
    ds_add_rtn_u32 v8, v1, v0 offset:{F_P}
    s_waitcnt lgkmcnt(0)
    v_readfirstlane_b32 s3, v8
    s_mov_b64 exec, 0xff
    s_cmp_lg_u32 s3, 3
    s_cbranch_scc1 L_noml
    ds_read_b128 v[56:59], v1 offset:{L_ML}
    ds_read_b128 v[60:63], v1 offset:{L_ML+16}
    s_waitcnt lgkmcnt(0)
    v_max_f32 v12, v56, v58
    v_max3_f32 v12, v12, v60, v62""")
    for k in range(4): a(f"v_sub_f32 v{56+2*k}, v{56+2*k}, v12")
    for k in range(4): a(f"v_exp_f32 v{56+2*k}, v{56+2*k}")
    a("""v_mul_f32 v13, v56, v57
    v_fmac_f32 v13, v58, v59
    v_fmac_f32 v13, v60, v61
    v_fmac_f32 v13, v62, v63
    s_cmp_lg_u32 s28, 0""")
    store2("ml", f"buffer_store_dwordx4 v[12:15], v3, s[40:43], s45 offen offset:{ML}")
    a("L_noml:\ns_mov_b64 exec, -1")
    stamp(5)
    if "t" in abl: a("s_branch L_K_end")
    a(f"""s_lshr_b32 s3, s29, 2
    s_sub_u32 s34, s32, 1
    s_cmp_lt_u32 s34, 2
    s_cselect_b32 s16, s30, 99
    s_cmp_eq_u32 s3, s16
    s_cselect_b32 s16, 1, 0
    s_cbranch_scc0 L_nofin
    v_lshrrev_b32 v8, 2, v2
    v_and_b32 v9, 3, v2
    v_lshlrev_b32 v14, 12, v8
    v_lshl_add_u32 v14, v9, 4, v14
    s_and_b32 s3, s29, 3
    s_lshl_b32 s3, s3, 1
    s_add_u32 s3, s3, s34
    s_lshl_b32 s3, s3, 6
    s_lshl_b32 s46, s30, 9
    s_add_u32 s46, s46, s3
    s_add_u32 s46, s46, {YB}
    s_add_u32 s47, s46, {16*4096}
    v_lshrrev_b32 v11, 5, v2
    v_lshl_add_u32 v11, v9, 1, v11
    s_lshl_b32 s3, s29, 1
    s_add_u32 s3, s3, s34
    s_lshl_b32 s3, s3, 3
    v_add_u32 v11, s3, v11
    v_lshlrev_b32 v11, 1, v11
    global_load_ushort v12, v11, s[4:5]
    v_and_b32 v8, 28, v2
    v_cmp_eq_u32 s[60:61], 0, v8
    L_nofin:""")
    if wd_early: a(wd)
    a(f"s_mov_b32 s35, {SPIN}\nL_gu:")
    a(f"""s_waitcnt vmcnt(0)
    v_permlane32_swap_b32 v24, v25
    v_permlane32_swap_b32 v26, v27
    v_add_f32 v24, v24, v25
    v_add_f32 v26, v26, v27
    v_mov_b32 v25, v24
    v_mov_b32 v27, v26
    s_nop 0
    v_permlane16_swap_b32 v24, v25
    v_permlane16_swap_b32 v26, v27
    v_add_f32 v24, v24, v25
    v_add_f32 v26, v26, v27
    s_nop 0
    v_add_f32_dpp v24, v24, v24 row_ror:8 row_mask:0xf bank_mask:0xf
    v_add_f32_dpp v26, v26, v26 row_ror:8 row_mask:0xf bank_mask:0xf
    v_cmp_u_f32 vcc, v24, v26
    s_cbranch_vccz L_gu_done
    s_sleep 8""")
    gu_loads()
    spin_tail("L_gu")
    a(f"""L_gu_done:
    v_cvt_pk_bf16_f32 v8, v24, v26
    v_lshlrev_b32 v24, 16, v8
    v_and_b32 v26, 0xffff0000, v8
    s_mov_b32 s3, 0x3d372713
    v_mul_f32 v8, v24, v24
    v_fma_f32 v8, v8, s3, 1.0
    v_mul_f32 v8, v8, v24
    v_mul_f32 v8, 0xc0135761, v8
    v_exp_f32 v8, v8
    s_nop 0
    v_add_f32 v8, 1.0, v8
    v_rcp_f32 v8, v8
    s_nop 0
    v_mul_f32 v8, v8, v24
    v_cvt_pk_bf16_f32 v8, v8, v8
    v_and_b32 v8, 0xffff0000, v8
    v_mul_f32 v8, v8, v26
    v_cvt_pk_bf16_f32 v8, v8, v8
    s_nop 1""")
    for rm, go in ((0x5, 0), (0xa, 2)):
        for bm, b in ((0x3, 0), (0xc, 1)):
            for u in range(2): a(f"v_mov_b32_dpp v{24+u}, v8 row_newbcast:{4*u+go+b} row_mask:{rm} bank_mask:{bm}")
            a("s_nop 0")
    for u in range(2):
        for r in range(4): a(f"v_and_b32 v{40+4*u+r}, v{24+u}, v{32+r}")
    stamp(6)
    if wide:
        a("""v_lshrrev_b32 v8, 4, v2
        v_and_b32 v9, 15, v2
        s_lshr_b32 s3, s30, 2
        s_lshl_b32 s34, s3, 6
        s_lshl_b32 s17, s32, 4
        s_add_u32 s34, s34, s17
        s_lshl_b32 s17, s29, 7
        s_add_u32 s34, s34, s17
        v_lshl_add_u32 v16, v8, 2, s34
        v_lshlrev_b32 v16, 10, v16
        s_and_b32 s17, s30, 3
        s_lshl_b32 s17, s17, 8
        v_lshl_add_u32 v12, v9, 4, s17
        v_add_u32 v16, v16, v12
        s_mul_i32 s3, s3, 24
        s_mul_i32 s34, s32, 6
        s_add_u32 s3, s3, s34
        s_mul_i32 s34, s29, 48
        s_add_u32 s3, s3, s34
        v_add_u32 v17, s3, v8
        v_lshlrev_b32 v17, 10, v17
        v_add_u32 v17, v17, v12
        v_cmp_gt_u32 vcc, 32, v2
        v_mov_b32 v12, 0x40000000
        v_add_u32 v19, 4096, v17
        v_cndmask_b32 v19, v12, v19, vcc""")
    lds_wait("vi", F_VI, 4, 1)
    stamp(7)
    if not wd_early: a(wd)
    wo_loads()
    if wowait: a("s_waitcnt vmcnt(0)")
    a("v_mov_b32 v23, s14\nv_lshlrev_b32 v19, 3, v2")
    stamp(13)
    lds_wait("opw", F_OP, 4, 0)
    stamp(8)
    def op_loads():
        a(f"buffer_load_dwordx2 v[56:57], v30, s[40:43], s44 offen offset:{ML} {pf}")
        for k in range(4): a(f"buffer_load_dwordx4 v[{64+4*k}:{67+4*k}], v20, s[40:43], s44 offen offset:{OP+OPS*k} {pf}")
    a(f"s_mov_b32 s35, {SPIN}")
    if buddy:
        op_loads()
        lds_sig(F_PL)
        a("s_branch L_op_w")
    a("L_op:")
    op_loads()
    a("L_op_w:")
    a("""s_waitcnt vmcnt(3)
    v_cmp_u_f32 s[18:19], v57, v67
    s_waitcnt vmcnt(1)
    v_cmp_u_f32 vcc, v71, v75
    s_waitcnt vmcnt(0)
    v_cmp_u_f32 s[58:59], v79, v79
    s_or_b64 s[18:19], s[18:19], vcc
    s_or_b64 exec, s[18:19], s[58:59]
    s_cbranch_execz L_op_have""")
    if psleep: a(f"s_sleep {psleep}")
    spin_tail("L_op")
    a("L_op_have:")
    stamp(14)
    a("""s_mov_b64 exec, -1
    v_max_f32_dpp v8, v56, v56 row_ror:8 row_mask:0xf bank_mask:0xf
    v_add_f32 v24, v64, v68
    v_mov_b32 v9, v8
    v_add_f32 v25, v65, v69
    v_add_f32 v26, v66, v70
    v_permlane16_swap_b32 v8, v9
    v_add_f32 v27, v67, v71
    v_max_f32 v8, v8, v9
    v_add_f32 v28, v72, v76
    v_mov_b32 v9, v8
    v_add_f32 v29, v73, v77
    v_add_f32 v58, v74, v78
    v_permlane32_swap_b32 v8, v9
    v_add_f32 v59, v75, v79
    v_max_f32 v8, v8, v9
    v_add_f32 v24, v24, v28
    v_sub_f32 v8, v56, v8
    v_add_f32 v25, v25, v29
    v_exp_f32 v8, v8
    v_add_f32 v26, v26, v58
    v_add_f32 v27, v27, v59
    v_mul_f32 v28, v8, v57
    v_mul_f32 v24, v24, v8
    v_mul_f32 v25, v25, v8
    v_mul_f32 v26, v26, v8
    v_mul_f32 v27, v27, v8
    v_add_f32_dpp v28, v28, v28 row_ror:8 row_mask:0xf bank_mask:0xf
    v_permlane32_swap_b32 v24, v25
    v_mov_b32 v29, v28
    v_permlane32_swap_b32 v26, v27
    v_add_f32 v24, v24, v25
    v_permlane16_swap_b32 v28, v29
    v_add_f32 v26, v26, v27
    v_add_f32 v28, v28, v29
    v_mfma_f32_16x16x32_bf16 v[48:51], v[40:43], v[112:115], 0
    v_mov_b32 v29, v28
    v_permlane16_swap_b32 v24, v26
    v_add_f32 v24, v24, v26
    v_permlane32_swap_b32 v28, v29
    v_add_f32 v28, v28, v29
    v_add_f32_dpp v24, v24, v24 row_ror:8 row_mask:0xf bank_mask:0xf
    v_rcp_f32 v28, v28
    v_mfma_f32_16x16x32_bf16 v[48:51], v[44:47], v[116:119], v[48:51]
    v_mul_f32 v24, v24, v28
    v_cmp_u_f32 vcc, v24, v24
    v_cvt_pk_bf16_f32 v24, v24, v24
    s_cbranch_vccz L_op_done
    s_cmp_eq_u32 s35, 0
    s_cbranch_scc1 L_op_done""")
    spin_tail("L_op")
    a("L_op_done:\ns_nop 0")
    stamp(9)
    for u in range(4): a(f"v_mov_b32_dpp v{60+u}, v24 row_newbcast:{2*u} row_mask:0xf bank_mask:0x3")
    for u in range(4): a(f"v_mov_b32_dpp v{60+u}, v24 row_newbcast:{2*u+1} row_mask:0xf bank_mask:0xc")
    for u in range(4):
        for r in range(4): a(f"v_and_b32 v{64+4*u+r}, v{60+u}, v{32+r}")
        if u: a(f"v_mfma_f32_16x16x32_bf16 v[48:51], v[{60+4*u}:{63+4*u}], v[{92+4*u}:{95+4*u}], v[48:51]")
    a(f"""s_cmp_eq_u32 s32, 0
    v_mfma_f32_16x16x32_bf16 v[48:51], v[76:79], v[108:111], v[48:51]
    s_mov_b64 exec, s[56:57]
    s_nop 6
    ds_write_b128 v21, v[48:51] offset:{L_Y}
    s_mov_b64 exec, -1
    s_waitcnt lgkmcnt(0)
    s_barrier""")
    stamp(10)
    a("s_cbranch_scc0 L_K_other")
    for k in range(4): a(f"ds_read2st64_b32 v[{8+2*k}:{9+2*k}], v22 offset0:{L_Y//256+2*k} offset1:{L_Y//256+2*k+1}")
    a(f"""s_waitcnt lgkmcnt(2)
    v_add_f32 v8, v8, v9
    v_add_f32 v10, v10, v11
    v_add_f32 v8, v8, v10
    s_waitcnt lgkmcnt(0)
    v_add_f32 v12, v12, v13
    v_add_f32 v14, v14, v15
    v_add_f32 v12, v12, v14
    v_add_f32 v22, v8, v12
    buffer_store_dwordx2 v[22:23], v19, s[40:43], s15 offen {sf}""")
    stamp(11)
    write_stamps()
    a(f"""s_endpgm
    L_K_other:
    s_cmp_eq_u32 s16, 0
    s_cbranch_scc1 L_K_end
    s_mov_b32 s35, {SPIN}
    L_yp:
    buffer_load_dwordx4 v[64:67], v14, s[40:43], s46 offen {pf}
    buffer_load_dwordx4 v[68:71], v14, s[40:43], s47 offen {pf}
    s_waitcnt vmcnt(1)
    v_cmp_ne_u32 vcc, s14, v65
    v_cmp_ne_u32 s[58:59], s14, v67
    s_waitcnt vmcnt(0)
    v_cmp_ne_u32 s[18:19], s14, v69
    v_cmp_ne_u32 s[56:57], s14, v71
    s_or_b64 vcc, vcc, s[58:59]
    s_or_b64 s[18:19], s[18:19], s[56:57]
    s_or_b64 exec, vcc, s[18:19]
    s_cbranch_execz L_yp_have""")
    if ysleep: a(f"s_sleep {ysleep}")
    spin_tail("L_yp")
    a("""L_yp_have:
    s_mov_b64 exec, -1
    v_add_f32 v72, v64, v68
    v_add_f32 v73, v66, v70
    v_lshlrev_b32 v13, 16, v12
    s_nop 0
    v_permlane32_swap_b32 v72, v73
    v_add_f32 v72, v72, v73
    v_mov_b32 v73, v72
    s_nop 1
    v_permlane16_swap_b32 v72, v73
    v_add_f32 v72, v72, v73
    s_nop 1
    v_add_f32_dpp v72, v72, v72 row_ror:8 row_mask:0xf bank_mask:0xf
    s_nop 1
    v_add_f32_dpp v72, v72, v72 row_ror:4 row_mask:0xf bank_mask:0xf
    v_add_f32 v72, v72, v13
    v_cvt_pk_bf16_f32 v72, v72, v72""")
    a(f"""L_yp_done:
    s_mov_b64 exec, s[60:61]
    global_store_short v11, v72, s[22:23] {of}""")
    stamp(12)
    a(f"""s_lshl_b32 s3, s29, 2
    s_add_u32 s3, s3, s32
    s_cmp_lg_u32 s3, 1
    s_cbranch_scc1 L_K_end
    s_mov_b64 exec, 1
    v_mov_b32 v8, s14
    s_mov_b32 s3, {EB}
    buffer_store_dword v8, v1, s[40:43], s3 offen""")
    if diag:
        dstamp(8, 62); dstamp(10)
    a("L_K_end:")
    write_stamps()
    a("L_end:\ns_endpgm")
    a(f"""L_V:
    v_mov_b32 v4, 0
    v_mov_b32 v5, 0
    v_mov_b32 v6, 0
    v_mov_b32 v7, 0
    s_mov_b64 exec, 3
    ds_write_b128 v3, v[4:7] offset:{L_FLAG}
    s_mov_b64 exec, -1
    {"s_xor_b32 s31, s31, 4" if swap and stamps else ""}
    s_cmp_lg_u32 s32, 0
    s_cbranch_scc1 L_V_other
    {f"s_setprio {prio}" if prio else ""}
    v_lshrrev_b32 v8, 4, v2
    v_and_b32 v9, 15, v2
    s_lshl_b32 s3, s30, 6
    v_lshl_add_u32 v10, v8, 4, s3
    v_lshlrev_b32 v11, 13, v10
    v_lshl_add_u32 v11, v9, 4, v11
    s_lshl_b32 s46, s29, 8
    s_waitcnt lgkmcnt(0)
    global_load_dwordx4 v[4:7], v3, s[4:5]
    s_barrier""")
    stamp(1)
    srd(48, 10, 0x400000)
    for t in range(16):
        if t: a(f"s_add_u32 s46, s46, 8192")
        if v0win and t >= v0win: a(f"s_waitcnt vmcnt({v0win-1})")
        if "w" not in abl: a(f"buffer_load_dwordx4 v[{128+4*t}:{131+4*t}], v11, s[48:51], s46 offen {wflag}")
    epoch_load()
    ffn_split()
    a(f"""v_and_b32 v12, 7, v9
    s_sub_u32 s3, s60, 1
    v_min_u32 v12, s3, v12
    v_add_u32 v12, s61, v12
    v_min_u32 v12, 171, v12
    v_mul_u32_u24 v13, 2752, v10
    v_lshl_add_u32 v12, v12, 4, v13
    v_add_u32 v12, 2752, v12
    v_mov_b32 v13, 0
    v_cmp_lt_u32 vcc, 7, v9
    v_mov_b32 v14, s16
    v_mov_b32 v15, s17
    v_mov_b32 v16, s18
    v_mov_b32 v17, s19
    v_cndmask_b32 v14, v14, v16, vcc
    v_cndmask_b32 v15, v15, v17, vcc
    v_lshl_add_u64 v[14:15], v[12:13], 0, v[14:15]
    s_mov_b64 s[52:53], 8256""")
    for t in range(16):
        if t % 3 == 0 and t: a("v_lshl_add_u64 v[14:15], v[14:15], 0, s[52:53]")
        if v0win: a(f"s_waitcnt vmcnt({v0win-1})")
        if "g" not in abl: a(f"global_load_dwordx4 v[{192+4*t}:{195+4*t}], v[14:15], off offset:{(t%3-1)*2752} {wflag}")
    if prio: a("s_setprio 0")
    stamp(2)
    def selectors():
        a("""s_mov_b32 s40, s26
        s_mov_b32 s41, s27
        v_and_b32 v8, 1, v2
        v_mov_b32 v9, 0x0c0c0100
        v_mov_b32 v10, 0x01000c0c
        v_cmp_eq_u32 vcc, 1, v8
        v_mov_b32 v11, 0x0c0c0302
        v_mov_b32 v12, 0x03020c0c
        v_cndmask_b32 v9, v9, v10, vcc
        v_cndmask_b32 v11, v11, v12, vcc
        v_bfe_u32 v8, v2, 1, 3
        v_mov_b32 v10, 0x0c0c0c0c""")
        for r in range(4):
            a(f"v_cmp_eq_u32 vcc, {r}, v8\ns_nop 1\nv_cndmask_b32 v{32+2*r}, v10, v9, vcc\nv_cndmask_b32 v{33+2*r}, v10, v11, vcc")
        a("""v_and_b32 v9, 15, v2
        v_lshlrev_b32 v9, 5, v9
        v_and_b32 v10, 16, v2
        v_add_u32 v31, v9, v10""")
    selectors()
    a("s_waitcnt vmcnt(32)")
    stamp(3)
    for k in range(4):
        a(f"v_lshlrev_b32 v{8+2*k}, 16, v{4+k}\nv_and_b32 v{9+2*k}, 0xffff0000, v{4+k}")
    a("""v_add_f32 v16, v8, v9
    v_add_f32 v17, v10, v11
    v_add_f32 v18, v12, v13
    v_add_f32 v19, v14, v15
    v_add_f32 v16, v16, v17
    v_add_f32 v18, v18, v19
    v_add_f32 v16, v16, v18""")
    allred("v_add_f32", 16, 17)
    a("v_mul_f32 v16, 0x3b000000, v16")
    a("v_sub_f32 v18, v8, v16\nv_mul_f32 v17, v18, v18")
    for k in range(1, 8): a(f"v_sub_f32 v18, v{8+k}, v16\nv_fmac_f32 v17, v18, v18")
    allred("v_add_f32", 17, 18)
    a("""v_mul_f32 v17, 0x3b000000, v17
    v_cvt_pk_bf16_f32 v16, v16, v17
    v_and_b32 v17, 0xffff0000, v16
    v_lshlrev_b32 v16, 16, v16
    v_add_f32 v17, 0x3727c5ac, v17
    v_cvt_pk_bf16_f32 v17, v17, v17
    v_and_b32 v17, 0xffff0000, v17
    v_sqrt_f32 v17, v17
    s_nop 0
    v_cvt_pk_bf16_f32 v17, v17, v17
    v_and_b32 v17, 0xffff0000, v17
    v_rcp_f32 v18, v17""")
    for k in range(4):
        lo, hi = 8 + 2 * k, 9 + 2 * k
        a(f"""v_sub_f32 v{lo}, v{lo}, v16
        v_sub_f32 v{hi}, v{hi}, v16
        v_cvt_pk_bf16_f32 v19, v{lo}, v{hi}
        v_lshlrev_b32 v{lo}, 16, v19
        v_and_b32 v{hi}, 0xffff0000, v19
        v_mul_f32 v19, v{lo}, v18
        v_mul_f32 v20, v{hi}, v18
        v_fma_f32 v{lo}, -v19, v17, v{lo}
        v_fma_f32 v{hi}, -v20, v17, v{hi}
        v_fma_f32 v19, v{lo}, v18, v19
        v_fma_f32 v20, v{hi}, v18, v20
        v_cvt_pk_bf16_f32 v{4+k}, v19, v20""")
    a(f"""ds_write_b128 v3, v[4:7] offset:{L_XN}
    v_lshrrev_b32 v8, 4, v2
    s_lshl_b32 s3, s30, 7
    v_lshl_add_u32 v8, v8, 5, s3
    s_waitcnt lgkmcnt(0)
    ds_read_b128 v[16:19], v8 offset:{L_XN}
    ds_read_b128 v[20:23], v8 offset:{L_XN+16}
    s_add_u32 s14, s14, 1
    s_mul_i32 s46, s47, {QREC}
    s_add_u32 s46, s46, {QA}
    s_getreg_b32 s3, hwreg(HW_REG_XCC_ID, 0, 4)
    v_mov_b32 v57, s14
    v_mov_b32 v59, s14
    v_mov_b32 v61, s14
    v_mov_b32 v63, s14
    v_mov_b32 v24, s3
    v_cmp_gt_u32 vcc, 32, v2
    v_lshlrev_b32 v25, 1, v31
    v_add_u32 v26, 512, v3
    s_waitcnt lgkmcnt(0)
    v_cndmask_b32 v26, v26, v25, vcc""")
    stamp(4)
    def chain(base, D, wait):
        for t in range(16):
            A = 40 + 4 * (t & 1)
            for r in range(4): a(f"v_perm_b32 v{A+r}, v{16+t//2}, v{16+t//2}, v{32+2*r+(t&1)}")
            if t == 0: a(f"s_nop 0\ns_waitcnt vmcnt({wait})")
            else: a("s_nop 1")
            a(f"v_mfma_f32_16x16x32_bf16 v[{D}:{D+3}], v[{A}:{A+3}], v[{base+4*t}:{base+3+4*t}], {'0' if t == 0 else f'v[{D}:{D+3}]'}")
    chain(128, 48, 16)
    lds_wait("clr", F_CLR, 4, 1)
    a(f"""s_nop 1
    v_cndmask_b32 v56, v24, v48, vcc
    v_cndmask_b32 v58, v24, v49, vcc
    v_mov_b32 v60, v50
    v_mov_b32 v62, v51
    s_mov_b32 exec_hi, 0xff
    buffer_store_dwordx4 v[56:59], v26, s[40:43], s46 offen
    ds_write_b128 v26, v[56:59] offset:{L_QI}
    s_mov_b32 exec_hi, 0
    buffer_store_dwordx4 v[60:63], v25, s[40:43], s46 offen offset:16
    ds_write_b128 v25, v[60:63] offset:{L_QI+16}
    s_mov_b32 exec_hi, -1""")
    stamp(5)
    chain(192, 52, 2)
    a(f"""s_mov_b32 exec_hi, 0
    s_nop 6
    buffer_store_dwordx4 v[52:55], v31, s[40:43], s45 offen offset:{GU}
    ds_write_b128 v31, v[52:55] offset:{L_GU}
    s_mov_b32 exec_hi, -1
    s_waitcnt lgkmcnt(0)
    ds_write_b32 v1, v0 offset:{F_G}""")
    stamp(6)
    a("s_branch L_V_load\nL_V_other:\ns_waitcnt lgkmcnt(0)\ns_barrier")
    selectors()
    a(f"""L_V_load:
    s_mov_b32 s36, s8
    s_mov_b32 s37, s9
    v_lshrrev_b32 v8, 4, v2
    s_lshl_b32 s3, s32, 8
    v_lshl_add_u32 v28, v8, 6, s3
    s_lshl_b32 s3, s32, 3
    v_mov_b32 v29, s3
    s_mul_i32 s3, s32, {OPS}
    s_add_u32 s46, s45, s3""")
    if buddy:
        a(f"s_xor_b32 s17, s30, {buddy}\ns_mov_b32 s18, s17")
        w_addr("s18")
    lds_wait("gate", F_GATE, 4, 1)
    stamp(8)
    bulk(WV, {wo_at: [lambda: lds_sig(F_VI)]}, 99, WV2, ramp)
    stamp(9)
    lds_wait("pw", F_P, 4, 1)
    stamp(10)
    for k in range(4): a(f"ds_read_b128 v[{56+4*k}:{59+4*k}], v28 offset:{L_P+16*k}")
    a(f"""ds_read_b32 v54, v1 offset:{L_LOC}
    ds_read_b32 v52, v29 offset:{L_ML}
    ds_read_b128 v[8:11], v1 offset:{L_ML}
    ds_read_b128 v[12:15], v1 offset:{L_ML+16}
    s_waitcnt lgkmcnt(0)
    v_readfirstlane_b32 s28, v54
    v_max_f32 v8, v8, v10
    v_max3_f32 v8, v8, v12, v14
    v_sub_f32 v52, v52, v8
    v_exp_f32 v52, v52
    s_cmp_lg_u32 s28, 0
    s_cselect_b32 s3, 0, {RB}
    s_add_u32 s46, s46, s3""")
    for t in range(32):
        A = 40 + 4 * (t & 1)
        for r in range(4): a(f"v_perm_b32 v{A+r}, v{56+t//2}, v{56+t//2}, v{32+2*r+(t&1)}")
        a(f"s_nop 0\ns_waitcnt vmcnt({31-t})" if t >= 32 - max(WV, WV2 or 0) else "s_nop 1")
        a(f"v_mfma_f32_16x16x32_bf16 v[48:51], v[{A}:{A+3}], v[{128+4*t}:{131+4*t}], {'0' if t == 0 else 'v[48:51]'}")
    stamp(11)
    a("s_mov_b32 exec_hi, 0\ns_cmp_lg_u32 s28, 0\ns_nop 5")
    for k in range(4): a(f"v_mul_f32 v{48+k}, v{48+k}, v52")
    if "o" not in abl: store2("op", f"buffer_store_dwordx4 v[48:51], v31, s[40:43], s46 offen offset:{OP}")
    a(f"s_mov_b64 exec, 1\nds_add_u32 v1, v0 offset:{F_OP}")
    if buddy:
        a("s_mov_b64 exec, -1")
        lds_wait("pl", F_PL, 4, 0)
        a(wd)
        wo_loads()
        a("s_barrier")
    write_stamps()
    a("s_endpgm")
    bad = lint(a.L)
    for b in bad[:6]: print("HAZARD need %d have %d:\n   %s\n   %s" % (b[2], b[3], b[0], b[1]), file=sys.stderr)
    return a.text() + footer()

if __name__ == "__main__":
    B = dict(WK=7, WV=8, qp_at=29, gate_at=29)
    V = {"v23": dict(B), "v23_a": dict(B, ne=6, nl=6), "v23_b": dict(B, ne=7, nl=4), "v23_c": dict(B, WV2=11, ramp=20), "v23_d": dict(B, ne=3, nl=8), "v23_e": dict(B, WV=7)}
    for n, kw in V.items():
        open(f"exp/{n}.s", "w").write(gen(**kw))
        open(f"exp/{n}_st.s", "w").write(gen(stamps=True, **kw))
        open(f"exp/{n}_dg.s", "w").write(gen(diag=True, **kw))
```

```python
import sys
from asmlib import *

REC, QREC = 2688, 1280
GU, OP, OPS, ML = 0, 512, 512, 2560
XI, BR = 1024, 1152
RB, YB, QA, QB, EB = 0x100000, 0x200000, 0x300000, 0x380000, 0x400000
L_XN, L_Q, L_FLAG, L_ML, L_P, L_Y, L_GU, L_QI = 0, 1024, 1296, 1536, 2048, 4096, 3072, 6144
L_LOC = L_Q + 256
F_Q, F_GATE, F_P, F_VI, F_CLR, F_OP, F_G = [L_FLAG + 4 * k for k in range(7)]
LDS = 8192
FAST = 24
SPIN = 20000
LOG2E = 0x3fb8aa3b

def gen(stamps=False, kvflag="nt", wflag="nt", WK=7, WV=7, gate_at=28, wo_at=31, qp_at=31, diag=False, pf="sc1", sf="sc1", of="", local=True, abl="", galias=True, v0win=0, csf="", wowait=False):
    a = Asm()
    HREC = 8 * REC
    def stamp(j):
        if stamps: a(f"s_memrealtime s[{64+2*j}:{65+2*j}]")
    def srd(d, b, n):
        a(f"s_mov_b32 s{d}, s{b}\ns_mov_b32 s{d+1}, s{b+1}\ns_mov_b32 s{d+2}, {n}\ns_mov_b32 s{d+3}, 0x20000")
    def allred16(op, r):
        for k in (8, 4, 2, 1):
            a(f"s_nop 1\n{op}_dpp v{r}, v{r}, v{r} row_ror:{k} row_mask:0xf bank_mask:0xf")
    def allred(op, r, t):
        allred16(op, r)
        for sw in ("v_permlane16_swap_b32", "v_permlane32_swap_b32"):
            a(f"v_mov_b32 v{t}, v{r}\ns_nop 1\n{sw} v{r}, v{t}\n{op} v{r}, v{r}, v{t}")
    def allred8(op, rs):
        for m in ("quad_perm:[1,0,3,2]", "quad_perm:[2,3,0,1]", "row_half_mirror"):
            for r in rs: a(f"{op}_dpp v{r}, v{r}, v{r} {m} row_mask:0xf bank_mask:0xf")
    def lds_sig(off):
        a(f"s_mov_b64 exec, 1\nds_add_u32 v1, v0 offset:{off}\ns_mov_b64 exec, -1")
    def bulk(W, hooks, nowait_after=99):
        for t in range(32):
            if t % 4 == 0 and t: a(f"s_add_u32 s33, s33, 16384")
            if W <= t <= nowait_after: a(f"s_waitcnt vmcnt({W-1})")
            a(f"buffer_load_dwordx4 v[{128+4*t}:{131+4*t}], v3, s[36:39], s33 offen offset:{(t%4)*1024} {kvflag}")
            for h in hooks.get(t, []): h()
    def spin_tail(lbl):
        a(f"s_sub_u32 s35, s35, 1\ns_cmp_lg_u32 s35, 0\ns_cbranch_scc1 {lbl}")
    def lds_wait(name, off, n, sleep):
        a(f"""s_mov_b32 s35, {SPIN*8}
        L_{name}:
        ds_read_b32 v10, v1 offset:{off}
        s_waitcnt lgkmcnt(0)
        v_readfirstlane_b32 s3, v10
        s_cmp_ge_u32 s3, {n}
        s_cbranch_scc1 L_{name}_done""")
        if sleep: a(f"s_sleep {sleep}")
        spin_tail(f"L_{name}")
        a(f"L_{name}_done:")
    def store2(name, ins):
        a(f"s_cbranch_scc1 L_{name}_loc\n{ins} {sf}\ns_branch L_{name}_j\nL_{name}_loc:\n{ins}\nL_{name}_j:")
    def dstamp(j, reg=None):
        if reg is None: a("s_memrealtime s[60:61]\ns_waitcnt lgkmcnt(0)")
        a(f"s_mov_b64 exec, 1\nv_mov_b32 v126, s{60 if reg is None else reg}\nv_mov_b32 v127, {4*j}\nglobal_store_dword v127, v126, s[24:25] sc1")
    def write_stamps():
        if not stamps: return
        a("s_waitcnt lgkmcnt(0)\ns_mov_b64 exec, 1")
        a(f"s_lshl_b32 s34, s2, 3\ns_add_u32 s34, s34, s31\ns_lshl_b32 s34, s34, 7\ns_add_u32 s34, s34, {128<<20}\nv_mov_b32 v2, s34")
        for j in range(16):
            a(f"v_mov_b32 v4, s{64+2*j}\nv_mov_b32 v5, s{65+2*j}\nbuffer_store_dwordx2 v[4:5], v2, s[40:43], 0 offen offset:{8*j}")
    def epoch_load():
        a(f"s_mov_b32 s3, {EB}\ns_load_dword s14, s[26:27], s3")

    a(f"; @launch grid=(256,1,1) block=(512,1,1) lds={LDS}")
    a('.amdgcn_target "amdgcn-amd-amdhsa--gfx950"\n.text')
    a(f".globl {KN}\n.p2align 8\n.type {KN},@function\n{KN}:")
    stamp(0)
    if diag: a("s_memrealtime s[62:63]")
    a(f"""s_load_dwordx16 s[4:19], s[0:1], 0
    s_load_dwordx8 s[20:27], s[0:1], 64
    v_lshrrev_b32 v1, 6, v0
    v_and_b32 v2, 63, v0
    s_cmp_ge_u32 s2, 256
    v_readfirstlane_b32 s31, v1
    s_cbranch_scc1 L_end""")
    if stamps:
        for j in range(1, 16): a(f"s_mov_b64 s[{64+2*j}:{65+2*j}], 0")
    a(f"""s_and_b32 s3, s2, 7
    s_lshr_b32 s28, s2, 3
    s_lshl_b32 s3, s3, 2
    s_and_b32 s29, s28, 3
    s_or_b32 s29, s29, s3
    s_lshr_b32 s30, s28, 2
    v_lshlrev_b32 v3, 4, v2
    s_and_b32 s32, s31, 3
    s_lshl_b32 s47, s29, 3
    s_add_u32 s47, s47, s30
    s_lshl_b32 s33, s47, 5
    s_add_u32 s33, s33, s32
    s_lshl_b32 s33, s33, 12
    s_mul_i32 s44, s29, {HREC}
    s_mul_i32 s45, s47, {REC}
    v_mov_b32 v0, 1
    v_mov_b32 v1, 0
    s_mov_b32 s38, 0x2000000
    s_mov_b32 s39, 0x20000
    s_mov_b32 s42, 0x10000000
    s_mov_b32 s43, 0x20000
    s_cmp_lt_u32 s31, 4
    s_cbranch_scc1 L_V""")
    a(f"""v_mov_b32 v4, -1
    v_mov_b32 v5, -1
    v_mov_b32 v6, -1
    v_mov_b32 v7, -1
    s_lshl_b32 s3, s32, 10
    s_add_u32 s34, s3, s45
    v_add_u32 v8, s3, v3
    v_cmp_gt_u32 vcc, {REC}, v8
    s_cmp_eq_u32 s32, 3
    s_waitcnt lgkmcnt(0)
    s_mov_b32 s36, s6
    s_mov_b32 s37, s7
    s_mov_b32 s40, s26
    s_mov_b32 s41, s27""")
    stamp(1)
    a(f"""s_cbranch_scc1 L_clr_j
    s_mov_b64 exec, vcc
    buffer_store_dwordx4 v[4:7], v3, s[40:43], s34 offen
    s_mov_b64 exec, -1
    L_clr_j:""")
    def h_setup():
        epoch_load()
        a(f"""s_lshl_b32 s15, s47, 9
        s_add_u32 s15, s15, {YB}
        s_barrier
        v_lshlrev_b32 v22, 2, v2
        v_lshrrev_b32 v8, 3, v2
        v_mul_u32_u24 v30, {REC}, v8
        v_mul_u32_u24 v28, {QREC}, v8
        s_mul_i32 s46, s29, {8*QREC}
        s_add_u32 s46, s46, {QA}
        s_waitcnt vmcnt({WK})""")
        lds_sig(F_CLR)
    def qp_loads():
        for u in range(8):
            if u % 3 == 0: a(f"s_add_u32 s3, s46, {u*QREC}")
            a(f"buffer_load_dwordx4 v[{64+4*u}:{67+4*u}], v3, s[40:43], s3 offen offset:{(u%3)*QREC} {pf}")
        a(f"buffer_load_dwordx2 v[96:97], v28, s[40:43], s46 offen offset:{XI} {pf}")
    def h_qp():
        a("s_cmp_lg_u32 s32, 0\ns_cbranch_scc1 L_noq")
        if "q" not in abl: qp_loads()
        a("L_noq:")
    hooks = {}
    for t, h in ((WK - 1, h_setup), (gate_at, lambda: lds_sig(F_GATE)), (qp_at, h_qp)): hooks.setdefault(t, []).append(h)
    bulk(WK, hooks, qp_at)
    stamp(2)
    a(f"""v_lshrrev_b32 v8, 3, v2
    v_and_b32 v9, 7, v2
    s_lshl_b32 s3, s29, 7
    s_lshl_b32 s34, s32, 5
    s_add_u32 s3, s3, s34
    v_bfe_u32 v10, v2, 3, 1
    v_lshl_add_u32 v16, v10, 2, s3
    v_bfe_u32 v10, v2, 4, 1
    v_lshl_add_u32 v16, v10, 1, v16
    v_lshrrev_b32 v10, 5, v2
    v_add_u32 v16, v16, v10
    v_lshlrev_b32 v16, 10, v16
    s_lshl_b32 s3, s30, 7
    v_lshl_add_u32 v12, v9, 4, s3
    v_add_u32 v16, v16, v12
    s_mul_i32 s3, s29, 48
    s_mul_i32 s17, s32, 12
    s_add_u32 s3, s3, s17
    v_bfe_u32 v10, v2, 4, 1
    v_lshl_add_u32 v17, v10, 2, s3
    v_bfe_u32 v10, v2, 3, 1
    v_lshl_add_u32 v17, v10, 1, v17
    v_lshrrev_b32 v10, 5, v2
    v_add_u32 v17, v17, v10
    v_lshlrev_b32 v17, 10, v17
    v_add_u32 v17, v17, v12
    v_and_b32 v10, 16, v2
    v_cmp_eq_u32 vcc, 0, v10
    v_mov_b32 v12, 0x40000000
    v_add_u32 v19, 8192, v17
    v_cndmask_b32 v19, v12, v19, vcc
    v_lshl_add_u32 v18, v9, 1, s17
    v_lshl_add_u32 v18, v18, 2, v30
    v_lshl_add_u32 v20, v9, 2, s34
    v_lshl_add_u32 v20, v20, 2, v30
    v_lshrrev_b32 v8, 5, v2
    s_lshl_b32 s3, s32, 9
    v_lshl_add_u32 v8, v8, 8, s3
    v_lshl_add_u32 v8, v9, 5, v8
    v_and_b32 v9, 16, v2
    v_add_u32 v21, v8, v9
    v_mov_b32 v11, 0
    s_mov_b32 s56, 0x00ff00ff
    s_mov_b32 s57, 0xff00ff00""")
    srd(48, 12, 0x400000)
    srd(52, 20, 1376 * 1024)
    a(f"""v_and_b32 v8, 1, v2
    v_mov_b32 v9, 0xffff
    v_mov_b32 v10, 0xffff0000
    v_cmp_eq_u32 vcc, 1, v8
    v_bfe_u32 v8, v2, 1, 2
    s_waitcnt lgkmcnt(0)
    s_add_u32 s14, s14, 1
    v_cndmask_b32 v9, v9, v10, vcc""")
    for r in range(4):
        a(f"v_cmp_eq_u32 vcc, {r}, v8\ns_nop 1\nv_cndmask_b32 v{32+r}, 0, v9, vcc")
    a(f"""s_cmp_lg_u32 s32, 0
    s_cbranch_scc1 L_qp_skip
    s_mov_b32 s35, {SPIN}
    s_mov_b32 s28, 1
    L_qp:
    s_waitcnt vmcnt(0)""")
    stamp(12)
    tags = [65 + 2 * k for k in range(16)] + [97]
    a(f"v_min_u32 v8, v{tags[0]}, v{tags[0]}\nv_max_u32 v9, v{tags[0]}, v{tags[0]}")
    for k in range(1, 17, 2):
        a(f"v_min3_u32 v8, v8, v{tags[k]}, v{tags[k+1]}\nv_max3_u32 v9, v9, v{tags[k]}, v{tags[k+1]}")
    def republish(name):
        a(f"s_cmp_eq_u32 s28, 0\ns_cbranch_scc1 L_{name}_x\ns_mov_b32 s28, 0\ns_mov_b32 s18, s35")
        lds_wait(name, F_G, 1, 1)
        a(f"""s_mov_b32 s35, s18
        ds_read_b128 v[100:103], v3 offset:{L_QI}
        ds_read_b128 v[104:107], v3 offset:{L_QI+XI}
        s_mul_i32 s3, s47, {QREC}
        s_add_u32 s3, s3, {QB}
        s_waitcnt lgkmcnt(0)
        buffer_store_dwordx4 v[100:103], v3, s[40:43], s3 offen {sf}
        s_mov_b64 exec, 0xff
        buffer_store_dwordx4 v[104:107], v3, s[40:43], s3 offen offset:{XI} {sf}
        s_mov_b64 exec, -1
        L_{name}_x:""")
    a(f"""v_cmp_ne_u32 vcc, s14, v8
    v_cmp_ne_u32 s[58:59], s14, v9
    s_or_b64 vcc, vcc, s[58:59]
    s_cbranch_vccz L_qp_done
    s_sleep 8
    s_cmp_gt_u32 s35, {SPIN-FAST}
    s_cbranch_scc1 L_qp_again""")
    republish("rp1")
    a(f"s_xor_b32 s46, s46, {QA ^ QB}\nL_qp_again:")
    qp_loads()
    spin_tail("L_qp")
    a("s_waitcnt vmcnt(0)\nL_qp_done:")
    for k in range(4): a(f"v_add_f32 v{64+8*k}, v{64+8*k}, v{68+8*k}\nv_add_f32 v{66+8*k}, v{66+8*k}, v{70+8*k}")
    a(f"""v_add_f32 v64, v64, v72
    v_add_f32 v66, v66, v74
    v_add_f32 v80, v80, v88
    v_add_f32 v82, v82, v90
    v_add_f32 v64, v64, v80
    v_add_f32 v66, v66, v82
    s_getreg_b32 s3, hwreg(HW_REG_XCC_ID, 0, 4)
    v_cmp_ne_u32 vcc, s3, v96
    v_cvt_pk_bf16_f32 v64, v64, v66
    s_cmp_eq_u64 vcc, 0
    s_cselect_b32 s19, {1 if local else 0}, 0
    s_cmp_lg_u32 s19, 0
    s_cbranch_scc1 L_loc""")
    republish("rp2")
    a(f"s_or_b32 s46, s46, {QA ^ QB}\ns_add_u32 s3, s45, {RB}")
    for k in range(2): a(f"buffer_store_dwordx4 v[4:7], v3, s[40:43], s3 offen offset:{1024*k} {sf}")
    a(f"""s_mov_b32 exec_hi, 0xff
    buffer_store_dwordx4 v[4:7], v3, s[40:43], s3 offen offset:2048 {sf}
    s_mul_i32 s3, s47, {QREC}
    s_add_u32 s3, s3, {QB}
    v_mov_b32 v8, s14
    v_mov_b32 v9, s14
    s_mov_b64 exec, 1
    s_waitcnt vmcnt(0)
    buffer_store_dwordx2 v[8:9], v1, s[40:43], s3 offen offset:{BR} {sf}
    s_mov_b64 exec, -1
    s_mov_b32 s35, {SPIN}
    L_br:
    buffer_load_dwordx2 v[8:9], v28, s[40:43], s46 offen offset:{BR} {pf}
    s_waitcnt vmcnt(0)
    v_cmp_ne_u32 vcc, s14, v9
    s_cbranch_vccz L_loc
    s_sleep 8""")
    spin_tail("L_br")
    a(f"""L_loc:
    v_mov_b32 v66, s19
    ds_write_b32 v1, v66 offset:{L_LOC}
    ds_write_b32 v22, v64 offset:{L_Q}
    s_waitcnt lgkmcnt(0)
    ds_write_b32 v1, v0 offset:{F_Q}
    L_qp_skip:""")
    a("v_and_b32 v9, 15, v2\nv_lshlrev_b32 v9, 4, v9")
    lds_wait("qf", F_Q, 1, 2)
    a(f"""ds_read_b128 v[4:7], v9 offset:{L_Q}
    ds_read_b32 v8, v1 offset:{L_LOC}
    s_waitcnt lgkmcnt(0)
    v_readfirstlane_b32 s28, v8
    s_cmp_lg_u32 s28, 0
    s_cselect_b32 s3, 0, {RB}
    s_add_u32 s44, s44, s3
    s_add_u32 s45, s45, s3""")
    stamp(3)
    n_pub = 0
    a("s_cmp_lg_u32 s32, 1\ns_cbranch_scc1 L_nogu")
    lds_wait("gw", F_G, 1, 1)
    a(f"s_mov_b32 exec_hi, 0\nds_read_b128 v[12:15], v3 offset:{L_GU}\ns_cmp_lg_u32 s28, 0\ns_waitcnt vmcnt(0) lgkmcnt(0)")
    store2("gu", f"buffer_store_dwordx4 v[12:15], v3, s[40:43], s45 offen offset:{GU}")
    a("s_mov_b32 exec_hi, -1\ns_branch L_gupub\nL_nogu:\ns_waitcnt vmcnt(0)\nL_gupub:")
    for grp in range(4):
        for k in range(4):
            for t in range(8 * grp, 8 * grp + 8):
                if k == 0: a(f"v_dot2_f32_bf16 v{64+t}, v{128+4*t}, v4, 0")
                else: a(f"v_dot2_f32_bf16 v{64+t}, v{128+4*t+k}, v{4+k}, v{64+t}")
    stamp(4)
    a("s_nop 1")
    for t in range(16):
        a(f"v_add_f32_dpp v{64+t}, v{64+t}, v{64+t} row_shl:8 row_mask:0xf bank_mask:0x3")
    for t in range(16):
        a(f"v_add_f32_dpp v{64+t}, v{80+t}, v{80+t} row_shr:8 row_mask:0xf bank_mask:0xc")
    for t in range(8):
        a(f"v_add_f32_dpp v{64+t}, v{64+t}, v{64+t} row_shl:4 row_mask:0xf bank_mask:0x5")
    for t in range(8):
        a(f"v_add_f32_dpp v{64+t}, v{72+t}, v{72+t} row_shr:4 row_mask:0xf bank_mask:0xa")
    a("v_and_b32 v8, 2, v2\nv_cmp_ne_u32 vcc, 0, v8")
    for t in range(8):
        a(f"v_add_f32_dpp v{64+t}, v{64+t}, v{64+t} quad_perm:[2,3,0,1] row_mask:0xf bank_mask:0xf")
    for t in range(4): a(f"v_cndmask_b32 v{64+t}, v{64+t}, v{68+t}, vcc")
    a("v_and_b32 v8, 1, v2\nv_cmp_ne_u32 vcc, 0, v8")
    for t in range(4):
        a(f"v_add_f32_dpp v{64+t}, v{64+t}, v{64+t} quad_perm:[1,0,3,2] row_mask:0xf bank_mask:0xf")
    for t in range(2): a(f"v_cndmask_b32 v{64+t}, v{64+t}, v{66+t}, vcc")
    a(f"""v_cvt_pk_bf16_f32 v8, v64, v65
    v_lshlrev_b32 v64, 16, v8
    v_and_b32 v65, 0xffff0000, v8
    v_mul_f32 v64, 0x3db504f3, v64
    v_mul_f32 v65, 0x3db504f3, v65
    v_cvt_pk_bf16_f32 v8, v64, v65
    v_lshlrev_b32 v64, 16, v8
    v_and_b32 v65, 0xffff0000, v8
    v_max_f32 v12, v64, v65""")
    allred("v_max_f32", 12, 13)
    a(f"""v_sub_f32 v64, v64, v12
    v_sub_f32 v65, v65, v12
    v_mul_f32 v64, {LOG2E}, v64
    v_mul_f32 v65, {LOG2E}, v65
    v_exp_f32 v64, v64
    v_exp_f32 v65, v65
    s_lshl_b32 s3, s32, 8
    v_lshl_add_u32 v9, v2, 2, s3
    v_cvt_pk_bf16_f32 v8, v64, v65
    v_add_f32 v13, v64, v65
    ds_write_b32 v9, v8 offset:{L_P}
    v_mul_f32 v12, {LOG2E}, v12""")
    allred("v_add_f32", 13, 14)
    a(f"""s_lshl_b32 s3, s32, 3
    v_mov_b32 v9, s3
    s_mov_b64 exec, 1
    ds_write_b64 v9, v[12:13] offset:{L_ML}
    s_waitcnt lgkmcnt(0)
    ds_add_rtn_u32 v8, v1, v0 offset:{F_P}
    s_waitcnt lgkmcnt(0)
    v_readfirstlane_b32 s3, v8
    s_mov_b64 exec, 0xff
    s_cmp_lg_u32 s3, 3
    s_cbranch_scc1 L_noml
    ds_read_b128 v[56:59], v1 offset:{L_ML}
    ds_read_b128 v[60:63], v1 offset:{L_ML+16}
    s_waitcnt lgkmcnt(0)
    v_max_f32 v12, v56, v58
    v_max3_f32 v12, v12, v60, v62""")
    for k in range(4): a(f"v_sub_f32 v{56+2*k}, v{56+2*k}, v12")
    for k in range(4): a(f"v_exp_f32 v{56+2*k}, v{56+2*k}")
    a("""v_mul_f32 v13, v56, v57
    v_fmac_f32 v13, v58, v59
    v_fmac_f32 v13, v60, v61
    v_fmac_f32 v13, v62, v63
    s_cmp_lg_u32 s28, 0""")
    store2("ml", f"buffer_store_dwordx4 v[12:15], v3, s[40:43], s45 offen offset:{ML}")
    a("L_noml:\ns_mov_b64 exec, -1")
    stamp(5)
    if "t" in abl: a("s_branch L_K_end")
    a(f"""s_lshr_b32 s3, s29, 2
    s_sub_u32 s34, s32, 1
    s_cmp_lt_u32 s34, 2
    s_cselect_b32 s16, s30, 99
    s_cmp_eq_u32 s3, s16
    s_cselect_b32 s16, 1, 0
    s_cbranch_scc0 L_nofin
    v_lshrrev_b32 v8, 2, v2
    v_and_b32 v9, 3, v2
    v_lshlrev_b32 v14, 12, v8
    v_lshl_add_u32 v14, v9, 4, v14
    s_and_b32 s3, s29, 3
    s_lshl_b32 s3, s3, 1
    s_add_u32 s3, s3, s34
    s_lshl_b32 s3, s3, 6
    s_lshl_b32 s46, s30, 9
    s_add_u32 s46, s46, s3
    s_add_u32 s46, s46, {YB}
    s_add_u32 s47, s46, {16*4096}
    v_lshrrev_b32 v11, 5, v2
    v_lshl_add_u32 v11, v9, 1, v11
    s_lshl_b32 s3, s29, 1
    s_add_u32 s3, s3, s34
    s_lshl_b32 s3, s3, 3
    v_add_u32 v11, s3, v11
    v_lshlrev_b32 v11, 1, v11
    global_load_ushort v12, v11, s[4:5]
    v_and_b32 v8, 28, v2
    v_cmp_eq_u32 s[60:61], 0, v8
    L_nofin:""")
    a(f"s_mov_b32 s35, {SPIN}\nL_gu:")
    a(f"""buffer_load_dwordx2 v[24:25], v18, s[40:43], s44 offen offset:{GU} {pf}
    buffer_load_dwordx2 v[26:27], v18, s[40:43], s44 offen offset:{GU+256} {pf}
    s_waitcnt vmcnt(0)
    v_permlane32_swap_b32 v24, v25
    v_permlane32_swap_b32 v26, v27
    v_add_f32 v24, v24, v25
    v_add_f32 v26, v26, v27
    v_mov_b32 v25, v24
    v_mov_b32 v27, v26
    s_nop 0
    v_permlane16_swap_b32 v24, v25
    v_permlane16_swap_b32 v26, v27
    v_add_f32 v24, v24, v25
    v_add_f32 v26, v26, v27
    s_nop 0
    v_add_f32_dpp v24, v24, v24 row_ror:8 row_mask:0xf bank_mask:0xf
    v_add_f32_dpp v26, v26, v26 row_ror:8 row_mask:0xf bank_mask:0xf
    v_cmp_u_f32 vcc, v24, v26
    s_cbranch_vccz L_gu_done
    s_sleep 8""")
    spin_tail("L_gu")
    a(f"""L_gu_done:
    v_cvt_pk_bf16_f32 v8, v24, v26
    v_lshlrev_b32 v24, 16, v8
    v_and_b32 v26, 0xffff0000, v8
    s_mov_b32 s3, 0x3d372713
    v_mul_f32 v8, v24, v24
    v_fma_f32 v8, v8, s3, 1.0
    v_mul_f32 v8, v8, v24
    v_mul_f32 v8, 0xc0135761, v8
    v_exp_f32 v8, v8
    s_nop 0
    v_add_f32 v8, 1.0, v8
    v_rcp_f32 v8, v8
    s_nop 0
    v_mul_f32 v8, v8, v24
    v_cvt_pk_bf16_f32 v8, v8, v8
    v_and_b32 v8, 0xffff0000, v8
    v_mul_f32 v8, v8, v26
    v_cvt_pk_bf16_f32 v8, v8, v8
    s_nop 1""")
    for rm, go in ((0x5, 0), (0xa, 2)):
        for bm, b in ((0x3, 0), (0xc, 1)):
            for u in range(2): a(f"v_mov_b32_dpp v{24+u}, v8 row_newbcast:{4*u+go+b} row_mask:{rm} bank_mask:{bm}")
            a("s_nop 0")
    for u in range(2):
        for r in range(4): a(f"v_and_b32 v{40+4*u+r}, v{24+u}, v{32+r}")
    stamp(6)
    lds_wait("vi", F_VI, 4, 1)
    stamp(7)
    a(f"buffer_load_dwordx4 v[112:115], v17, s[52:55], 0 offen {wflag}\nbuffer_load_dwordx4 v[116:119], v19, s[52:55], 0 offen {wflag}")
    for u in range(4): a(f"s_mov_b32 s3, {8192*u}\nbuffer_load_dwordx4 v[{96+4*u}:{99+4*u}], v16, s[48:51], s3 offen {wflag}")
    if wowait: a("s_waitcnt vmcnt(0)")
    a("v_mov_b32 v23, s14\nv_lshlrev_b32 v19, 3, v2")
    stamp(13)
    lds_wait("opw", F_OP, 4, 0)
    stamp(8)
    a(f"s_mov_b32 s35, {SPIN}\nL_op:")
    a(f"buffer_load_dwordx2 v[56:57], v30, s[40:43], s44 offen offset:{ML} {pf}")
    for k in range(4): a(f"buffer_load_dwordx4 v[{64+4*k}:{67+4*k}], v20, s[40:43], s44 offen offset:{OP+OPS*k} {pf}")
    a("""s_waitcnt vmcnt(3)
    v_cmp_u_f32 s[18:19], v57, v67
    s_waitcnt vmcnt(1)
    v_cmp_u_f32 vcc, v71, v75
    s_waitcnt vmcnt(0)
    v_cmp_u_f32 s[58:59], v79, v79
    s_or_b64 s[18:19], s[18:19], vcc
    s_or_b64 exec, s[18:19], s[58:59]
    s_cbranch_execz L_op_have""")
    spin_tail("L_op")
    a("L_op_have:")
    stamp(14)
    a("""s_mov_b64 exec, -1
    v_max_f32_dpp v8, v56, v56 row_ror:8 row_mask:0xf bank_mask:0xf
    v_add_f32 v24, v64, v68
    v_mov_b32 v9, v8
    v_add_f32 v25, v65, v69
    v_add_f32 v26, v66, v70
    v_permlane16_swap_b32 v8, v9
    v_add_f32 v27, v67, v71
    v_max_f32 v8, v8, v9
    v_add_f32 v28, v72, v76
    v_mov_b32 v9, v8
    v_add_f32 v29, v73, v77
    v_add_f32 v58, v74, v78
    v_permlane32_swap_b32 v8, v9
    v_add_f32 v59, v75, v79
    v_max_f32 v8, v8, v9
    v_add_f32 v24, v24, v28
    v_sub_f32 v8, v56, v8
    v_add_f32 v25, v25, v29
    v_exp_f32 v8, v8
    v_add_f32 v26, v26, v58
    v_add_f32 v27, v27, v59
    v_mul_f32 v28, v8, v57
    v_mul_f32 v24, v24, v8
    v_mul_f32 v25, v25, v8
    v_mul_f32 v26, v26, v8
    v_mul_f32 v27, v27, v8
    v_add_f32_dpp v28, v28, v28 row_ror:8 row_mask:0xf bank_mask:0xf
    v_permlane32_swap_b32 v24, v25
    v_mov_b32 v29, v28
    v_permlane32_swap_b32 v26, v27
    v_add_f32 v24, v24, v25
    v_permlane16_swap_b32 v28, v29
    v_add_f32 v26, v26, v27
    v_add_f32 v28, v28, v29
    v_mfma_f32_16x16x32_bf16 v[48:51], v[40:43], v[112:115], 0
    v_mov_b32 v29, v28
    v_permlane16_swap_b32 v24, v26
    v_add_f32 v24, v24, v26
    v_permlane32_swap_b32 v28, v29
    v_add_f32 v28, v28, v29
    v_add_f32_dpp v24, v24, v24 row_ror:8 row_mask:0xf bank_mask:0xf
    v_rcp_f32 v28, v28
    v_mfma_f32_16x16x32_bf16 v[48:51], v[44:47], v[116:119], v[48:51]
    v_mul_f32 v24, v24, v28
    v_cmp_u_f32 vcc, v24, v24
    v_cvt_pk_bf16_f32 v24, v24, v24
    s_cbranch_vccz L_op_done
    s_cmp_eq_u32 s35, 0
    s_cbranch_scc1 L_op_done""")
    spin_tail("L_op")
    a("L_op_done:\ns_nop 0")
    stamp(9)
    for u in range(4): a(f"v_mov_b32_dpp v{60+u}, v24 row_newbcast:{2*u} row_mask:0xf bank_mask:0x3")
    for u in range(4): a(f"v_mov_b32_dpp v{60+u}, v24 row_newbcast:{2*u+1} row_mask:0xf bank_mask:0xc")
    for u in range(4):
        for r in range(4): a(f"v_and_b32 v{64+4*u+r}, v{60+u}, v{32+r}")
        if u: a(f"v_mfma_f32_16x16x32_bf16 v[48:51], v[{60+4*u}:{63+4*u}], v[{92+4*u}:{95+4*u}], v[48:51]")
    a(f"""s_cmp_eq_u32 s32, 0
    v_mfma_f32_16x16x32_bf16 v[48:51], v[76:79], v[108:111], v[48:51]
    s_mov_b64 exec, s[56:57]
    s_nop 6
    ds_write_b128 v21, v[48:51] offset:{L_Y}
    s_mov_b64 exec, -1
    s_waitcnt lgkmcnt(0)
    s_barrier""")
    stamp(10)
    a("s_cbranch_scc0 L_K_other")
    for k in range(4): a(f"ds_read2st64_b32 v[{8+2*k}:{9+2*k}], v22 offset0:{L_Y//256+2*k} offset1:{L_Y//256+2*k+1}")
    a(f"""s_waitcnt lgkmcnt(2)
    v_add_f32 v8, v8, v9
    v_add_f32 v10, v10, v11
    v_add_f32 v8, v8, v10
    s_waitcnt lgkmcnt(0)
    v_add_f32 v12, v12, v13
    v_add_f32 v14, v14, v15
    v_add_f32 v12, v12, v14
    v_add_f32 v22, v8, v12
    buffer_store_dwordx2 v[22:23], v19, s[40:43], s15 offen {sf}""")
    stamp(11)
    write_stamps()
    a(f"""s_endpgm
    L_K_other:
    s_cmp_eq_u32 s16, 0
    s_cbranch_scc1 L_K_end
    s_mov_b32 s35, {SPIN}
    L_yp:
    buffer_load_dwordx4 v[64:67], v14, s[40:43], s46 offen {pf}
    buffer_load_dwordx4 v[68:71], v14, s[40:43], s47 offen {pf}
    s_waitcnt vmcnt(1)
    v_cmp_ne_u32 vcc, s14, v65
    v_cmp_ne_u32 s[58:59], s14, v67
    s_waitcnt vmcnt(0)
    v_cmp_ne_u32 s[18:19], s14, v69
    v_cmp_ne_u32 s[56:57], s14, v71
    s_or_b64 vcc, vcc, s[58:59]
    s_or_b64 s[18:19], s[18:19], s[56:57]
    s_or_b64 exec, vcc, s[18:19]
    s_cbranch_execz L_yp_have""")
    spin_tail("L_yp")
    a("""L_yp_have:
    s_mov_b64 exec, -1
    v_add_f32 v72, v64, v68
    v_add_f32 v73, v66, v70
    v_lshlrev_b32 v13, 16, v12
    s_nop 0
    v_permlane32_swap_b32 v72, v73
    v_add_f32 v72, v72, v73
    v_mov_b32 v73, v72
    s_nop 1
    v_permlane16_swap_b32 v72, v73
    v_add_f32 v72, v72, v73
    s_nop 1
    v_add_f32_dpp v72, v72, v72 row_ror:8 row_mask:0xf bank_mask:0xf
    s_nop 1
    v_add_f32_dpp v72, v72, v72 row_ror:4 row_mask:0xf bank_mask:0xf
    v_add_f32 v72, v72, v13
    v_cvt_pk_bf16_f32 v72, v72, v72""")
    a(f"""L_yp_done:
    s_mov_b64 exec, s[60:61]
    global_store_short v11, v72, s[22:23] {of}""")
    stamp(12)
    a(f"""s_lshl_b32 s3, s29, 2
    s_add_u32 s3, s3, s32
    s_cmp_lg_u32 s3, 1
    s_cbranch_scc1 L_K_end
    s_mov_b64 exec, 1
    v_mov_b32 v8, s14
    s_mov_b32 s3, {EB}
    buffer_store_dword v8, v1, s[40:43], s3 offen""")
    if diag:
        dstamp(8, 62); dstamp(10)
    a("L_K_end:")
    write_stamps()
    a("L_end:\ns_endpgm")
    a(f"""L_V:
    v_mov_b32 v4, 0
    v_mov_b32 v5, 0
    v_mov_b32 v6, 0
    v_mov_b32 v7, 0
    s_mov_b64 exec, 3
    ds_write_b128 v3, v[4:7] offset:{L_FLAG}
    s_mov_b64 exec, -1
    s_cmp_lg_u32 s31, 0
    s_cbranch_scc1 L_V_other
    v_lshrrev_b32 v8, 4, v2
    v_and_b32 v9, 15, v2
    s_lshl_b32 s3, s30, 6
    v_lshl_add_u32 v10, v8, 4, s3
    v_lshlrev_b32 v11, 13, v10
    v_lshl_add_u32 v11, v9, 4, v11
    s_lshl_b32 s46, s29, 8
    s_waitcnt lgkmcnt(0)
    global_load_dwordx4 v[4:7], v3, s[4:5]
    s_barrier""")
    stamp(1)
    srd(48, 10, 0x400000)
    for t in range(16):
        if t: a(f"s_add_u32 s46, s46, 8192")
        if v0win and t >= v0win: a(f"s_waitcnt vmcnt({v0win-1})")
        if "w" not in abl: a(f"buffer_load_dwordx4 v[{128+4*t}:{131+4*t}], v11, s[48:51], s46 offen {wflag}")
    epoch_load()
    a(f"""v_and_b32 v12, 7, v9
    {"v_min_u32 v12, 5, v12" if galias else ""}
    s_mul_i32 s3, s29, 6
    v_add_u32 v12, s3, v12
    v_min_u32 v12, 171, v12
    v_mul_u32_u24 v13, 2752, v10
    v_lshl_add_u32 v12, v12, 4, v13
    v_add_u32 v12, 2752, v12
    v_mov_b32 v13, 0
    v_cmp_lt_u32 vcc, 7, v9
    v_mov_b32 v14, s16
    v_mov_b32 v15, s17
    v_mov_b32 v16, s18
    v_mov_b32 v17, s19
    v_cndmask_b32 v14, v14, v16, vcc
    v_cndmask_b32 v15, v15, v17, vcc
    v_lshl_add_u64 v[14:15], v[12:13], 0, v[14:15]
    s_mov_b64 s[52:53], 8256""")
    for t in range(16):
        if t % 3 == 0 and t: a("v_lshl_add_u64 v[14:15], v[14:15], 0, s[52:53]")
        if v0win: a(f"s_waitcnt vmcnt({v0win-1})")
        if "g" not in abl: a(f"global_load_dwordx4 v[{192+4*t}:{195+4*t}], v[14:15], off offset:{(t%3-1)*2752} {wflag}")
    stamp(2)
    def selectors():
        a("""s_mov_b32 s40, s26
        s_mov_b32 s41, s27
        v_and_b32 v8, 1, v2
        v_mov_b32 v9, 0x0c0c0100
        v_mov_b32 v10, 0x01000c0c
        v_cmp_eq_u32 vcc, 1, v8
        v_mov_b32 v11, 0x0c0c0302
        v_mov_b32 v12, 0x03020c0c
        v_cndmask_b32 v9, v9, v10, vcc
        v_cndmask_b32 v11, v11, v12, vcc
        v_bfe_u32 v8, v2, 1, 3
        v_mov_b32 v10, 0x0c0c0c0c""")
        for r in range(4):
            a(f"v_cmp_eq_u32 vcc, {r}, v8\ns_nop 1\nv_cndmask_b32 v{32+2*r}, v10, v9, vcc\nv_cndmask_b32 v{33+2*r}, v10, v11, vcc")
        a("""v_and_b32 v9, 15, v2
        v_lshlrev_b32 v9, 5, v9
        v_and_b32 v10, 16, v2
        v_add_u32 v31, v9, v10""")
    selectors()
    a("s_waitcnt vmcnt(32)")
    stamp(3)
    for k in range(4):
        a(f"v_lshlrev_b32 v{8+2*k}, 16, v{4+k}\nv_and_b32 v{9+2*k}, 0xffff0000, v{4+k}")
    a("""v_add_f32 v16, v8, v9
    v_add_f32 v17, v10, v11
    v_add_f32 v18, v12, v13
    v_add_f32 v19, v14, v15
    v_add_f32 v16, v16, v17
    v_add_f32 v18, v18, v19
    v_add_f32 v16, v16, v18""")
    allred("v_add_f32", 16, 17)
    a("v_mul_f32 v16, 0x3b000000, v16")
    a("v_sub_f32 v18, v8, v16\nv_mul_f32 v17, v18, v18")
    for k in range(1, 8): a(f"v_sub_f32 v18, v{8+k}, v16\nv_fmac_f32 v17, v18, v18")
    allred("v_add_f32", 17, 18)
    a("""v_mul_f32 v17, 0x3b000000, v17
    v_cvt_pk_bf16_f32 v16, v16, v17
    v_and_b32 v17, 0xffff0000, v16
    v_lshlrev_b32 v16, 16, v16
    v_add_f32 v17, 0x3727c5ac, v17
    v_cvt_pk_bf16_f32 v17, v17, v17
    v_and_b32 v17, 0xffff0000, v17
    v_sqrt_f32 v17, v17
    s_nop 0
    v_cvt_pk_bf16_f32 v17, v17, v17
    v_and_b32 v17, 0xffff0000, v17
    v_rcp_f32 v18, v17""")
    for k in range(4):
        lo, hi = 8 + 2 * k, 9 + 2 * k
        a(f"""v_sub_f32 v{lo}, v{lo}, v16
        v_sub_f32 v{hi}, v{hi}, v16
        v_cvt_pk_bf16_f32 v19, v{lo}, v{hi}
        v_lshlrev_b32 v{lo}, 16, v19
        v_and_b32 v{hi}, 0xffff0000, v19
        v_mul_f32 v19, v{lo}, v18
        v_mul_f32 v20, v{hi}, v18
        v_fma_f32 v{lo}, -v19, v17, v{lo}
        v_fma_f32 v{hi}, -v20, v17, v{hi}
        v_fma_f32 v19, v{lo}, v18, v19
        v_fma_f32 v20, v{hi}, v18, v20
        v_cvt_pk_bf16_f32 v{4+k}, v19, v20""")
    a(f"""ds_write_b128 v3, v[4:7] offset:{L_XN}
    v_lshrrev_b32 v8, 4, v2
    s_lshl_b32 s3, s30, 7
    v_lshl_add_u32 v8, v8, 5, s3
    s_waitcnt lgkmcnt(0)
    ds_read_b128 v[16:19], v8 offset:{L_XN}
    ds_read_b128 v[20:23], v8 offset:{L_XN+16}
    s_add_u32 s14, s14, 1
    s_mul_i32 s46, s47, {QREC}
    s_add_u32 s46, s46, {QA}
    s_getreg_b32 s3, hwreg(HW_REG_XCC_ID, 0, 4)
    v_mov_b32 v57, s14
    v_mov_b32 v59, s14
    v_mov_b32 v61, s14
    v_mov_b32 v63, s14
    v_mov_b32 v24, s3
    v_cmp_gt_u32 vcc, 32, v2
    v_lshlrev_b32 v25, 1, v31
    v_add_u32 v26, 512, v3
    s_waitcnt lgkmcnt(0)
    v_cndmask_b32 v26, v26, v25, vcc""")
    stamp(4)
    def chain(base, D, wait):
        for t in range(16):
            A = 40 + 4 * (t & 1)
            for r in range(4): a(f"v_perm_b32 v{A+r}, v{16+t//2}, v{16+t//2}, v{32+2*r+(t&1)}")
            if t == 0: a(f"s_nop 0\ns_waitcnt vmcnt({wait})")
            else: a("s_nop 1")
            a(f"v_mfma_f32_16x16x32_bf16 v[{D}:{D+3}], v[{A}:{A+3}], v[{base+4*t}:{base+3+4*t}], {'0' if t == 0 else f'v[{D}:{D+3}]'}")
    chain(128, 48, 16)
    lds_wait("clr", F_CLR, 4, 1)
    a(f"""s_nop 1
    v_cndmask_b32 v56, v24, v48, vcc
    v_cndmask_b32 v58, v24, v49, vcc
    v_mov_b32 v60, v50
    v_mov_b32 v62, v51
    s_mov_b32 exec_hi, 0xff
    buffer_store_dwordx4 v[56:59], v26, s[40:43], s46 offen
    ds_write_b128 v26, v[56:59] offset:{L_QI}
    s_mov_b32 exec_hi, 0
    buffer_store_dwordx4 v[60:63], v25, s[40:43], s46 offen offset:16
    ds_write_b128 v25, v[60:63] offset:{L_QI+16}
    s_mov_b32 exec_hi, -1""")
    stamp(5)
    chain(192, 52, 2)
    a(f"""s_mov_b32 exec_hi, 0
    s_nop 6
    ds_write_b128 v31, v[52:55] offset:{L_GU}
    s_mov_b32 exec_hi, -1
    s_waitcnt lgkmcnt(0)
    ds_write_b32 v1, v0 offset:{F_G}""")
    stamp(6)
    a("s_branch L_V_load\nL_V_other:\ns_waitcnt lgkmcnt(0)\ns_barrier")
    selectors()
    a(f"""L_V_load:
    s_mov_b32 s36, s8
    s_mov_b32 s37, s9
    v_lshrrev_b32 v8, 4, v2
    s_lshl_b32 s3, s32, 8
    v_lshl_add_u32 v28, v8, 6, s3
    s_lshl_b32 s3, s32, 3
    v_mov_b32 v29, s3
    s_mul_i32 s3, s32, {OPS}
    s_add_u32 s46, s45, s3""")
    lds_wait("gate", F_GATE, 4, 1)
    stamp(8)
    bulk(WV, {wo_at: [lambda: lds_sig(F_VI)]})
    stamp(9)
    lds_wait("pw", F_P, 4, 1)
    stamp(10)
    for k in range(4): a(f"ds_read_b128 v[{56+4*k}:{59+4*k}], v28 offset:{L_P+16*k}")
    a(f"""ds_read_b32 v54, v1 offset:{L_LOC}
    ds_read_b32 v52, v29 offset:{L_ML}
    ds_read_b128 v[8:11], v1 offset:{L_ML}
    ds_read_b128 v[12:15], v1 offset:{L_ML+16}
    s_waitcnt lgkmcnt(0)
    v_readfirstlane_b32 s28, v54
    v_max_f32 v8, v8, v10
    v_max3_f32 v8, v8, v12, v14
    v_sub_f32 v52, v52, v8
    v_exp_f32 v52, v52
    s_cmp_lg_u32 s28, 0
    s_cselect_b32 s3, 0, {RB}
    s_add_u32 s46, s46, s3""")
    for t in range(32):
        A = 40 + 4 * (t & 1)
        for r in range(4): a(f"v_perm_b32 v{A+r}, v{56+t//2}, v{56+t//2}, v{32+2*r+(t&1)}")
        a(f"s_nop 0\ns_waitcnt vmcnt({31-t})" if t >= 32 - WV else "s_nop 1")
        a(f"v_mfma_f32_16x16x32_bf16 v[48:51], v[{A}:{A+3}], v[{128+4*t}:{131+4*t}], {'0' if t == 0 else 'v[48:51]'}")
    stamp(11)
    a("s_mov_b32 exec_hi, 0\ns_cmp_lg_u32 s28, 0\ns_nop 5")
    for k in range(4): a(f"v_mul_f32 v{48+k}, v{48+k}, v52")
    store2("op", f"buffer_store_dwordx4 v[48:51], v31, s[40:43], s46 offen offset:{OP}")
    a(f"s_mov_b64 exec, 1\nds_add_u32 v1, v0 offset:{F_OP}")
    write_stamps()
    a("s_endpgm")
    bad = lint(a.L)
    for b in bad[:6]: print("HAZARD need %d have %d:\n   %s\n   %s" % (b[2], b[3], b[0], b[1]), file=sys.stderr)
    return a.text() + footer()

if __name__ == "__main__":
    V = {"v18": {}, "v18_a": dict(wowait=True), "v18_b": dict(WK=8, WV=9), "v18_c": dict(WK=6, WV=7), "v18_d": dict(wo_at=26), "v18_e": dict(wo_at=20)}
    for n, kw in V.items():
        open(f"exp/{n}.s", "w").write(gen(**kw))
        open(f"exp/{n}_st.s", "w").write(gen(stamps=True, **kw))
        open(f"exp/{n}_dg.s", "w").write(gen(diag=True, **kw))
```

```python
import sys
from asmlib import *

REC, QREC = 1152, 1280
GU, OP, ML = 0, 512, 1024
XI, BR = 1024, 1152
RB, YB, QA, QB, EB = 0x200000, 0xa8000, 0x100000, 0x180000, 0xc8000
L_XN, L_Q, L_FLAG, L_ML, L_P, L_Y, L_GU, L_QI, L_O = 0, 1024, 1296, 1536, 2048, 4096, 3072, 6144, 8192
L_LOC = L_Q + 256
F_Q, F_GATE, F_P, F_VI, F_CLR, F_OP, F_G, F_PL = [L_FLAG + 4 * k for k in range(8)]
LDS = 10240
FAST = 24
SPIN = 200000
LOG2E = 0x3fb8aa3b

def gen(stamps=False, kvflag="nt", wflag="nt", WK=7, WV=7, gate_at=28, wo_at=31, qp_at=31, diag=False, pf="sc1", sf="sc1", of="", local=True, abl="", galias=True, v0win=0, csf="", wowait=False, swap=False, prio=0, wd_early=False, kprio=0, psleep=0, woflag=None, ysleep=0, buddy=0, WV2=None, ramp=12, WK2=None, kramp=12, wide=False, ne=6, nl=6, touch=True, gu_late=2, ypf=None, ysf=None):
    a = Asm()
    HREC = 8 * REC
    def stamp(j):
        if stamps: a(f"s_memrealtime s[{64+2*j}:{65+2*j}]")
    def srd(d, b, n):
        a(f"s_mov_b32 s{d}, s{b}\ns_mov_b32 s{d+1}, s{b+1}\ns_mov_b32 s{d+2}, {n}\ns_mov_b32 s{d+3}, 0x20000")
    def allred16(op, r):
        for k in (8, 4, 2, 1):
            a(f"s_nop 1\n{op}_dpp v{r}, v{r}, v{r} row_ror:{k} row_mask:0xf bank_mask:0xf")
    def allred(op, r, t):
        allred16(op, r)
        for sw in ("v_permlane16_swap_b32", "v_permlane32_swap_b32"):
            a(f"v_mov_b32 v{t}, v{r}\ns_nop 1\n{sw} v{r}, v{t}\n{op} v{r}, v{r}, v{t}")
    def allred8(op, rs):
        for m in ("quad_perm:[1,0,3,2]", "quad_perm:[2,3,0,1]", "row_half_mirror"):
            for r in rs: a(f"{op}_dpp v{r}, v{r}, v{r} {m} row_mask:0xf bank_mask:0xf")
    def lds_sig(off):
        a(f"s_mov_b64 exec, 1\nds_add_u32 v1, v0 offset:{off}\ns_mov_b64 exec, -1")
    def bulk(W1, hooks, nowait_after=99, W2=None, at=99):
        for t in range(32):
            W = W2 if W2 and t >= at else W1
            if t % 4 == 0 and t: a(f"s_addk_i32 s33, 0x4000")
            if W <= t <= nowait_after: a(f"s_waitcnt vmcnt({W-1})")
            a(f"buffer_load_dwordx4 v[{128+4*t}:{131+4*t}], v3, s[36:39], s33 offen offset:{(t%4)*1024} {kvflag}")
            for h in hooks.get(t, []): h()
    def spin_tail(lbl):
        a(f"s_sub_u32 s35, s35, 1\ns_cmp_lg_u32 s35, 0\ns_cbranch_scc1 {lbl}")
    def lds_wait(name, off, n, sleep):
        a(f"""s_mov_b32 s35, {SPIN*8}
        L_{name}:
        ds_read_b32 v10, v1 offset:{off}
        s_waitcnt lgkmcnt(0)
        v_readfirstlane_b32 s3, v10
        s_cmp_ge_u32 s3, {n}
        s_cbranch_scc1 L_{name}_done""")
        if sleep: a(f"s_sleep {sleep}")
        spin_tail(f"L_{name}")
        a(f"L_{name}_done:")
    def store2(name, ins):
        a(f"s_cbranch_scc1 L_{name}_loc\n{ins} {sf}\ns_branch L_{name}_j\nL_{name}_loc:\n{ins}\nL_{name}_j:")
    def dstamp(j, reg=None):
        if reg is None: a("s_memrealtime s[60:61]\ns_waitcnt lgkmcnt(0)")
        a(f"s_mov_b64 exec, 1\nv_mov_b32 v126, s{60 if reg is None else reg}\nv_mov_b32 v127, {4*j}\nglobal_store_dword v127, v126, s[24:25] sc1")
    def write_stamps():
        if not stamps: return
        a("s_waitcnt lgkmcnt(0)\ns_mov_b64 exec, 1")
        a(f"s_lshl_b32 s34, s2, 3\ns_add_u32 s34, s34, s31\ns_lshl_b32 s34, s34, 7\ns_add_u32 s34, s34, {128<<20}\nv_mov_b32 v2, s34")
        for j in range(16):
            a(f"v_mov_b32 v4, s{64+2*j}\nv_mov_b32 v5, s{65+2*j}\nbuffer_store_dwordx2 v[4:5], v2, s[40:43], 0 offen offset:{8*j}")
    def epoch_load():
        a(f"s_mov_b32 s3, {EB}\ns_load_dword s14, s[26:27], s3")

    def ffn_split():
        a(f"""s_mul_i32 s61, s29, {ne}
        s_mul_i32 s3, s29, {nl}
        s_add_u32 s3, s3, {16*(ne-nl)}
        s_cmp_lt_u32 s29, 16
        s_cselect_b32 s61, s61, s3
        s_cselect_b32 s60, {ne}, {nl}""")
    def w_addr(sreg):
        a(f"""v_lshrrev_b32 v8, 3, v2
    v_and_b32 v9, 7, v2
    s_lshl_b32 s3, s29, 7
    s_lshl_b32 s34, s32, 5
    s_add_u32 s3, s3, s34
    v_bfe_u32 v10, v2, 3, 1
    v_lshl_add_u32 v16, v10, 2, s3
    v_bfe_u32 v10, v2, 4, 1
    v_lshl_add_u32 v16, v10, 1, v16
    v_lshrrev_b32 v10, 5, v2
    v_add_u32 v16, v16, v10
    v_lshlrev_b32 v16, 10, v16
    s_lshl_b32 s3, {sreg}, 7
    v_lshl_add_u32 v12, v9, 4, s3
    v_add_u32 v16, v16, v12
    s_lshl_b32 s16, s60, 1
    s_mul_i32 s17, s32, s16
    s_lshl_b32 s3, s61, 3
    s_add_u32 s3, s3, s17
    v_bfe_u32 v10, v2, 4, 1
    v_lshlrev_b32 v19, 2, v10
    v_bfe_u32 v10, v2, 3, 1
    v_lshl_add_u32 v19, v10, 1, v19
    v_lshrrev_b32 v10, 5, v2
    v_add_u32 v10, v19, v10
    v_add_u32 v17, s3, v10
    v_lshlrev_b32 v17, 10, v17
    v_add_u32 v17, v17, v12
    v_add_u32 v19, 8192, v17
    v_mov_b32 v12, 0x40000000
    v_cmp_gt_u32 vcc, s16, v10
    v_add_u32 v10, 8, v10
    v_cmp_gt_u32 s[58:59], s16, v10
    v_cndmask_b32 v17, v12, v17, vcc
    s_nop 0
    v_cndmask_b32 v19, v12, v19, s[58:59]""")
        srd(48, 12, 0x400000)
        srd(52, 20, 1376 * 1024)
    wf = wflag if woflag is None else woflag
    wd = f"buffer_load_dwordx4 v[112:115], v17, s[52:55], 0 offen {wf}\nbuffer_load_dwordx4 v[116:119], v19, s[52:55], 0 offen {wf}"
    def wo_loads():
        for u in range(4): a(f"s_mov_b32 s3, {(1024 if wide else 8192)*u}\nbuffer_load_dwordx4 v[{96+4*u}:{99+4*u}], v16, s[48:51], s3 offen {wf}")

    a(f"; @launch grid=(256,1,1) block=(512,1,1) lds={LDS}")
    a('.amdgcn_target "amdgcn-amd-amdhsa--gfx950"\n.text')
    a(f".globl {KN}\n.p2align 8\n.type {KN},@function\n{KN}:")
    stamp(0)
    if diag: a("s_memrealtime s[62:63]")
    a(f"""s_load_dwordx2 s[36:37], s[0:1], 8
    v_lshrrev_b32 v1, 6, v0
    s_and_b32 s3, s2, 7
    s_lshr_b32 s47, s2, 3
    v_readfirstlane_b32 s31, v1
    s_lshl_b32 s3, s3, 5
    s_or_b32 s47, s47, s3
    v_and_b32 v2, 63, v0
    s_lshl_b32 s33, s47, 5
    s_and_b32 s32, s31, 3
    v_lshlrev_b32 v3, 4, v2
    s_or_b32 s33, s33, s32
    s_lshl_b32 s33, s33, 12
    s_lshl_b32 s38, 1, 25
    s_lshl_b32 s39, 1, 17
    s_cmpk_ge_u32 s2, 256
    s_cbranch_scc1 L_end
    s_cmp_lt_u32 s31, 4
    s_cbranch_scc0 L_K
    s_barrier
    s_branch L_V
    L_K:""")
    def common():
        a(f"""s_load_dwordx16 s[4:19], s[0:1], 0
        s_load_dwordx8 s[20:27], s[0:1], 64
        s_lshr_b32 s29, s47, 3
        s_and_b32 s30, s47, 7
        s_mul_i32 s44, s29, {HREC}
        s_mul_i32 s45, s47, {REC}
        v_mov_b32 v0, 1
        v_mov_b32 v1, 0
        s_mov_b32 s42, 0x10000000
        s_mov_b32 s43, 0x20000""")
        if stamps:
            for j in range(2, 16): a(f"s_mov_b64 s[{64+2*j}:{65+2*j}], 0")
    a("s_waitcnt lgkmcnt(0)")
    stamp(1)
    def h_clear():
        common()
        a(f"""v_mov_b32 v8, 0
        v_mov_b32 v9, 0
        s_mov_b64 exec, 15
        v_lshlrev_b32 v10, 3, v2
        ds_write_b64 v10, v[8:9] offset:{L_FLAG}
        s_mov_b64 exec, -1
        v_mov_b32 v4, -1
        v_mov_b32 v5, -1
        v_mov_b32 v6, -1
        v_mov_b32 v7, -1
        s_lshl_b32 s3, s32, 10
        s_add_u32 s34, s3, s45
        v_add_u32 v8, s3, v3
        v_cmp_gt_u32 vcc, {REC}, v8
        s_cmp_ge_u32 s32, 2
        s_waitcnt lgkmcnt(0)
        s_barrier
        s_mov_b32 s40, s26
        s_mov_b32 s41, s27
        s_cbranch_scc1 L_clr_j
        s_mov_b64 exec, vcc
        buffer_store_dwordx4 v[4:7], v3, s[40:43], s34 offen
        s_mov_b64 exec, -1
        L_clr_j:""")
        epoch_load()
        a(f"""s_lshl_b32 s15, s47, 9
        s_add_u32 s15, s15, {YB}
        v_lshlrev_b32 v22, 2, v2
        v_lshrrev_b32 v8, 3, v2
        v_mul_u32_u24 v30, {REC}, v8
        v_mul_u32_u24 v28, {QREC}, v8
        s_mul_i32 s46, s29, {8*QREC}
        s_add_u32 s46, s46, {QA}""")
    def h_setup():
        lds_sig(F_CLR)
    def qp_loads():
        for u in range(8):
            if u % 3 == 0: a(f"s_add_u32 s3, s46, {u*QREC}")
            a(f"buffer_load_dwordx4 v[{64+4*u}:{67+4*u}], v3, s[40:43], s3 offen offset:{(u%3)*QREC} {pf}")
        a(f"buffer_load_dwordx2 v[96:97], v28, s[40:43], s46 offen offset:{XI} {pf}")
    def h_qp():
        a("s_cmp_lg_u32 s32, 0\ns_cbranch_scc1 L_noq")
        if "q" not in abl: qp_loads()
        a("L_noq:")
    hooks = {}
    for t, h in ((WK - 1, h_clear), (2 * WK - 1, h_setup), (gate_at, lambda: lds_sig(F_GATE)), (qp_at, h_qp)): hooks.setdefault(t, []).append(h)
    bulk(WK, hooks, qp_at, WK2, kramp)
    stamp(2)
    if kprio: a(f"s_setprio {kprio}")
    ffn_split()
    w_addr('s30')
    a(f"""v_lshl_add_u32 v18, v9, 1, s17
    v_lshl_add_u32 v18, v18, 2, v30
    v_lshl_add_u32 v20, v9, 2, s34
    v_lshl_add_u32 v20, v20, 2, v30
    v_lshrrev_b32 v8, 5, v2
    s_lshl_b32 s3, s32, 9
    v_lshl_add_u32 v8, v8, 8, s3
    v_lshl_add_u32 v8, v9, 5, v8
    v_and_b32 v9, 16, v2
    v_add_u32 v21, v8, v9
    v_mov_b32 v11, 0
    s_mov_b32 s56, 0x00ff00ff
    s_mov_b32 s57, 0xff00ff00""")
    a(f"""v_and_b32 v8, 1, v2
    v_mov_b32 v9, 0xffff
    v_mov_b32 v10, 0xffff0000
    v_cmp_eq_u32 vcc, 1, v8
    v_bfe_u32 v8, v2, 1, 2
    s_waitcnt lgkmcnt(0)
    s_add_u32 s14, s14, 1
    v_cndmask_b32 v9, v9, v10, vcc""")
    for r in range(4):
        a(f"v_cmp_eq_u32 vcc, {r}, v8\ns_nop 1\nv_cndmask_b32 v{32+r}, 0, v9, vcc")
    a(f"""s_cmp_lg_u32 s32, 0
    s_cbranch_scc1 L_qp_skip
    s_mov_b32 s35, {SPIN}
    s_mov_b32 s28, 1
    L_qp:
    s_waitcnt vmcnt(0)""")
    stamp(12)
    tags = [65 + 2 * k for k in range(16)] + [97]
    a(f"v_min_u32 v8, v{tags[0]}, v{tags[0]}\nv_max_u32 v9, v{tags[0]}, v{tags[0]}")
    for k in range(1, 17, 2):
        a(f"v_min3_u32 v8, v8, v{tags[k]}, v{tags[k+1]}\nv_max3_u32 v9, v9, v{tags[k]}, v{tags[k+1]}")
    def republish(name):
        a(f"s_cmp_eq_u32 s28, 0\ns_cbranch_scc1 L_{name}_x\ns_mov_b32 s28, 0\ns_mov_b32 s18, s35")
        lds_wait(name, F_G, 1, 1)
        a(f"""s_mov_b32 s35, s18
        ds_read_b128 v[100:103], v3 offset:{L_QI}
        ds_read_b128 v[104:107], v3 offset:{L_QI+XI}
        s_mul_i32 s3, s47, {QREC}
        s_add_u32 s3, s3, {QB}
        s_waitcnt lgkmcnt(0)
        buffer_store_dwordx4 v[100:103], v3, s[40:43], s3 offen {sf}
        s_mov_b64 exec, 0xff
        buffer_store_dwordx4 v[104:107], v3, s[40:43], s3 offen offset:{XI} {sf}
        s_mov_b64 exec, -1
        L_{name}_x:""")
    a(f"""v_cmp_ne_u32 vcc, s14, v8
    v_cmp_ne_u32 s[58:59], s14, v9
    s_or_b64 vcc, vcc, s[58:59]
    s_cbranch_vccz L_qp_done
    s_sleep 8
    s_cmp_gt_u32 s35, {SPIN-FAST}
    s_cbranch_scc1 L_qp_again""")
    republish("rp1")
    a(f"s_xor_b32 s46, s46, {QA ^ QB}\nL_qp_again:")
    qp_loads()
    spin_tail("L_qp")
    a("s_waitcnt vmcnt(0)\nL_qp_done:")
    for k in range(4): a(f"v_add_f32 v{64+8*k}, v{64+8*k}, v{68+8*k}\nv_add_f32 v{66+8*k}, v{66+8*k}, v{70+8*k}")
    a(f"""v_add_f32 v64, v64, v72
    v_add_f32 v66, v66, v74
    v_add_f32 v80, v80, v88
    v_add_f32 v82, v82, v90
    v_add_f32 v64, v64, v80
    v_add_f32 v66, v66, v82
    s_getreg_b32 s3, hwreg(HW_REG_XCC_ID, 0, 4)
    v_cmp_ne_u32 vcc, s3, v96
    v_cvt_pk_bf16_f32 v64, v64, v66
    s_cmp_eq_u64 vcc, 0
    s_cselect_b32 s19, {1 if local else 0}, 0
    s_cmp_lg_u32 s19, 0
    s_cbranch_scc1 L_loc""")
    republish("rp2")
    a(f"s_or_b32 s46, s46, {QA ^ QB}\ns_add_u32 s3, s45, {RB}")
    a(f"""buffer_store_dwordx4 v[4:7], v3, s[40:43], s3 offen {sf}
    s_mov_b64 exec, 0xff
    buffer_store_dwordx4 v[4:7], v3, s[40:43], s3 offen offset:1024 {sf}
    s_mul_i32 s3, s47, {QREC}
    s_add_u32 s3, s3, {QB}
    v_mov_b32 v8, s14
    v_mov_b32 v9, s14
    s_mov_b64 exec, 1
    s_waitcnt vmcnt(0)
    buffer_store_dwordx2 v[8:9], v1, s[40:43], s3 offen offset:{BR} {sf}
    s_mov_b64 exec, -1
    s_mov_b32 s35, {SPIN}
    L_br:
    buffer_load_dwordx2 v[8:9], v28, s[40:43], s46 offen offset:{BR} {pf}
    s_waitcnt vmcnt(0)
    v_cmp_ne_u32 vcc, s14, v9
    s_cbranch_vccz L_loc
    s_sleep 8""")
    spin_tail("L_br")
    a(f"""L_loc:
    v_mov_b32 v66, s19
    ds_write_b32 v1, v66 offset:{L_LOC}
    ds_write_b32 v22, v64 offset:{L_Q}
    s_waitcnt lgkmcnt(0)
    ds_write_b32 v1, v0 offset:{F_Q}
    L_qp_skip:""")
    a("v_and_b32 v9, 15, v2\nv_lshlrev_b32 v9, 4, v9")
    lds_wait("qf", F_Q, 1, 2)
    a(f"""ds_read_b128 v[4:7], v9 offset:{L_Q}
    ds_read_b32 v8, v1 offset:{L_LOC}
    s_waitcnt lgkmcnt(0)
    v_readfirstlane_b32 s28, v8
    s_cmp_lg_u32 s28, 0
    s_cselect_b32 s3, 0, {RB}
    s_add_u32 s44, s44, s3
    s_add_u32 s45, s45, s3""")
    stamp(3)
    n_pub = 0
    a(f"s_lshl_b32 s3, s28, 2\ns_add_u32 s3, s3, s32\ns_cmp_lg_u32 s3, 1\ns_cbranch_scc1 L_nogu")
    lds_wait("gw", F_G, 1, 1)
    a(f"""s_mov_b32 exec_hi, 0
    ds_read_b128 v[12:15], v3 offset:{L_GU}
    s_waitcnt lgkmcnt(0)
    buffer_store_dwordx4 v[12:15], v3, s[40:43], s45 offen offset:{GU} {sf}
    s_mov_b32 exec_hi, -1
    L_nogu:""")
    def gu_loads():
        a(f"buffer_load_dwordx2 v[24:25], v18, s[40:43], s44 offen offset:{GU} {pf}\nbuffer_load_dwordx2 v[26:27], v18, s[40:43], s44 offen offset:{GU+256} {pf}")
    gu_loads()
    a("s_waitcnt vmcnt(2)")
    for grp in range(4):
        for k in range(4):
            for t in range(8 * grp, 8 * grp + 8):
                if k == 0: a(f"v_dot2_f32_bf16 v{64+t}, v{128+4*t}, v4, 0")
                else: a(f"v_dot2_f32_bf16 v{64+t}, v{128+4*t+k}, v{4+k}, v{64+t}")
    stamp(4)
    a("s_nop 1")
    for t in range(16):
        a(f"v_add_f32_dpp v{64+t}, v{64+t}, v{64+t} row_shl:8 row_mask:0xf bank_mask:0x3")
    for t in range(16):
        a(f"v_add_f32_dpp v{64+t}, v{80+t}, v{80+t} row_shr:8 row_mask:0xf bank_mask:0xc")
    for t in range(8):
        a(f"v_add_f32_dpp v{64+t}, v{64+t}, v{64+t} row_shl:4 row_mask:0xf bank_mask:0x5")
    for t in range(8):
        a(f"v_add_f32_dpp v{64+t}, v{72+t}, v{72+t} row_shr:4 row_mask:0xf bank_mask:0xa")
    a("v_and_b32 v8, 2, v2\nv_cmp_ne_u32 vcc, 0, v8")
    for t in range(8):
        a(f"v_add_f32_dpp v{64+t}, v{64+t}, v{64+t} quad_perm:[2,3,0,1] row_mask:0xf bank_mask:0xf")
    for t in range(4): a(f"v_cndmask_b32 v{64+t}, v{64+t}, v{68+t}, vcc")
    a("v_and_b32 v8, 1, v2\nv_cmp_ne_u32 vcc, 0, v8")
    for t in range(4):
        a(f"v_add_f32_dpp v{64+t}, v{64+t}, v{64+t} quad_perm:[1,0,3,2] row_mask:0xf bank_mask:0xf")
    for t in range(2): a(f"v_cndmask_b32 v{64+t}, v{64+t}, v{66+t}, vcc")
    a(f"""v_cvt_pk_bf16_f32 v8, v64, v65
    v_lshlrev_b32 v64, 16, v8
    v_and_b32 v65, 0xffff0000, v8
    v_mul_f32 v64, 0x3db504f3, v64
    v_mul_f32 v65, 0x3db504f3, v65
    v_cvt_pk_bf16_f32 v8, v64, v65
    v_lshlrev_b32 v64, 16, v8
    v_and_b32 v65, 0xffff0000, v8
    v_max_f32 v12, v64, v65""")
    allred("v_max_f32", 12, 13)
    a(f"""v_sub_f32 v64, v64, v12
    v_sub_f32 v65, v65, v12
    v_mul_f32 v64, {LOG2E}, v64
    v_mul_f32 v65, {LOG2E}, v65
    v_exp_f32 v64, v64
    v_exp_f32 v65, v65
    s_lshl_b32 s3, s32, 8
    v_lshl_add_u32 v9, v2, 2, s3
    v_cvt_pk_bf16_f32 v8, v64, v65
    v_add_f32 v13, v64, v65
    ds_write_b32 v9, v8 offset:{L_P}
    v_mul_f32 v12, {LOG2E}, v12""")
    allred("v_add_f32", 13, 14)
    a(f"""s_lshl_b32 s3, s32, 3
    v_mov_b32 v9, s3
    s_mov_b64 exec, 1
    ds_write_b64 v9, v[12:13] offset:{L_ML}
    s_waitcnt lgkmcnt(0)
    ds_add_rtn_u32 v8, v1, v0 offset:{F_P}
    s_waitcnt lgkmcnt(0)
    v_readfirstlane_b32 s3, v8
    s_mov_b64 exec, 0xff
    s_cmp_lg_u32 s3, 3
    s_cbranch_scc1 L_noml
    ds_read_b128 v[56:59], v1 offset:{L_ML}
    ds_read_b128 v[60:63], v1 offset:{L_ML+16}
    s_waitcnt lgkmcnt(0)
    v_max_f32 v12, v56, v58
    v_max3_f32 v12, v12, v60, v62""")
    for k in range(4): a(f"v_sub_f32 v{56+2*k}, v{56+2*k}, v12")
    for k in range(4): a(f"v_exp_f32 v{56+2*k}, v{56+2*k}")
    a("""v_mul_f32 v13, v56, v57
    v_fmac_f32 v13, v58, v59
    v_fmac_f32 v13, v60, v61
    v_fmac_f32 v13, v62, v63
    s_cmp_lg_u32 s28, 0""")
    store2("ml", f"buffer_store_dwordx4 v[12:15], v3, s[40:43], s45 offen offset:{ML}")
    a("L_noml:\ns_mov_b64 exec, -1")
    stamp(5)
    if "t" in abl: a("s_branch L_K_end")
    a(f"""s_lshr_b32 s3, s29, 2
    s_sub_u32 s34, s32, 1
    s_cmp_lt_u32 s34, 2
    s_cselect_b32 s16, s30, 99
    s_cmp_eq_u32 s3, s16
    s_cselect_b32 s16, 1, 0
    s_cbranch_scc0 L_nofin
    v_lshrrev_b32 v8, 2, v2
    v_and_b32 v9, 3, v2
    v_lshlrev_b32 v14, 12, v8
    v_lshl_add_u32 v14, v9, 4, v14
    s_and_b32 s3, s29, 3
    s_lshl_b32 s3, s3, 1
    s_add_u32 s3, s3, s34
    s_lshl_b32 s3, s3, 6
    s_lshl_b32 s46, s30, 9
    s_add_u32 s46, s46, s3
    s_add_u32 s46, s46, {YB}
    s_add_u32 s47, s46, {16*4096}
    v_lshrrev_b32 v11, 5, v2
    v_lshl_add_u32 v11, v9, 1, v11
    s_lshl_b32 s3, s29, 1
    s_add_u32 s3, s3, s34
    s_lshl_b32 s3, s3, 3
    v_add_u32 v11, s3, v11
    v_lshlrev_b32 v11, 1, v11
    global_load_ushort v12, v11, s[4:5]
    v_and_b32 v8, 28, v2
    v_cmp_eq_u32 s[60:61], 0, v8
    L_nofin:""")
    if wd_early: a(wd)
    a(f"s_mov_b32 s35, {SPIN}\nL_gu:")
    a(f"""s_waitcnt vmcnt(0)
    v_permlane32_swap_b32 v24, v25
    v_permlane32_swap_b32 v26, v27
    v_add_f32 v24, v24, v25
    v_add_f32 v26, v26, v27
    v_mov_b32 v25, v24
    v_mov_b32 v27, v26
    s_nop 0
    v_permlane16_swap_b32 v24, v25
    v_permlane16_swap_b32 v26, v27
    v_add_f32 v24, v24, v25
    v_add_f32 v26, v26, v27
    s_nop 0
    v_add_f32_dpp v24, v24, v24 row_ror:8 row_mask:0xf bank_mask:0xf
    v_add_f32_dpp v26, v26, v26 row_ror:8 row_mask:0xf bank_mask:0xf
    v_cmp_u_f32 vcc, v24, v26
    s_cbranch_vccz L_gu_done
    s_sleep 8""")
    gu_loads()
    spin_tail("L_gu")
    a(f"""L_gu_done:
    v_cvt_pk_bf16_f32 v8, v24, v26
    v_lshlrev_b32 v24, 16, v8
    v_and_b32 v26, 0xffff0000, v8
    s_mov_b32 s3, 0x3d372713
    v_mul_f32 v8, v24, v24
    v_fma_f32 v8, v8, s3, 1.0
    v_mul_f32 v8, v8, v24
    v_mul_f32 v8, 0xc0135761, v8
    v_exp_f32 v8, v8
    s_nop 0
    v_add_f32 v8, 1.0, v8
    v_rcp_f32 v8, v8
    s_nop 0
    v_mul_f32 v8, v8, v24
    v_cvt_pk_bf16_f32 v8, v8, v8
    v_and_b32 v8, 0xffff0000, v8
    v_mul_f32 v8, v8, v26
    v_cvt_pk_bf16_f32 v8, v8, v8
    s_nop 1""")
    for rm, go in ((0x5, 0), (0xa, 2)):
        for bm, b in ((0x3, 0), (0xc, 1)):
            for u in range(2): a(f"v_mov_b32_dpp v{24+u}, v8 row_newbcast:{4*u+go+b} row_mask:{rm} bank_mask:{bm}")
            a("s_nop 0")
    for u in range(2):
        for r in range(4): a(f"v_and_b32 v{40+4*u+r}, v{24+u}, v{32+r}")
    stamp(6)
    if wide:
        a("""v_lshrrev_b32 v8, 4, v2
        v_and_b32 v9, 15, v2
        s_lshr_b32 s3, s30, 2
        s_lshl_b32 s34, s3, 6
        s_lshl_b32 s17, s32, 4
        s_add_u32 s34, s34, s17
        s_lshl_b32 s17, s29, 7
        s_add_u32 s34, s34, s17
        v_lshl_add_u32 v16, v8, 2, s34
        v_lshlrev_b32 v16, 10, v16
        s_and_b32 s17, s30, 3
        s_lshl_b32 s17, s17, 8
        v_lshl_add_u32 v12, v9, 4, s17
        v_add_u32 v16, v16, v12
        s_mul_i32 s3, s3, 24
        s_mul_i32 s34, s32, 6
        s_add_u32 s3, s3, s34
        s_mul_i32 s34, s29, 48
        s_add_u32 s3, s3, s34
        v_add_u32 v17, s3, v8
        v_lshlrev_b32 v17, 10, v17
        v_add_u32 v17, v17, v12
        v_cmp_gt_u32 vcc, 32, v2
        v_mov_b32 v12, 0x40000000
        v_add_u32 v19, 4096, v17
        v_cndmask_b32 v19, v12, v19, vcc""")
    lds_wait("vi", F_VI, 4, 1)
    stamp(7)
    if not wd_early: a(wd)
    wo_loads()
    if wowait: a("s_waitcnt vmcnt(0)")
    a(f"""v_mov_b32 v23, s14
    v_lshlrev_b32 v19, 3, v2
    v_lshrrev_b32 v8, 3, v2
    v_cmp_ne_u32 s[18:19], s30, v8
    v_and_b32 v8, 7, v2
    s_lshl_b32 s3, s32, 7
    v_lshl_add_u32 v29, v8, 4, s3
    s_mov_b32 s35, {SPIN}
    s_not_b64 s[58:59], s[18:19]""")
    stamp(13)
    a(f"""s_barrier
    s_mov_b64 exec, s[58:59]""")
    for k in range(4): a(f"ds_read_b128 v[{64+4*k}:{67+4*k}], v29 offset:{L_O+512*k}")
    a("s_cmp_lg_u32 s28, 0\ns_waitcnt lgkmcnt(2)")
    for u in range(4): a(f"v_add_f32 v{64+u}, v{64+u}, v{68+u}")
    a("s_waitcnt lgkmcnt(0)")
    for u in range(4): a(f"v_add_f32 v{72+u}, v{72+u}, v{76+u}")
    for u in range(4): a(f"v_add_f32 v{80+u}, v{64+u}, v{72+u}")
    store2("op", f"buffer_store_dwordx4 v[80:83], v20, s[40:43], s44 offen offset:{OP}")
    stamp(8)
    a(f"""s_mov_b64 exec, -1
    buffer_load_dwordx2 v[56:57], v30, s[40:43], s44 offen offset:{ML} {pf}
    s_mov_b64 exec, s[18:19]
    buffer_load_dwordx4 v[80:83], v20, s[40:43], s44 offen offset:{OP} {pf}
    s_mov_b64 exec, -1
    s_waitcnt vmcnt(0)
    s_branch L_op_w
    L_op:""")
    a(f"""buffer_load_dwordx2 v[56:57], v30, s[40:43], s44 offen offset:{ML} {pf}
    L_op1:
    buffer_load_dwordx4 v[80:83], v20, s[40:43], s44 offen offset:{OP} {pf}
    s_waitcnt vmcnt(0)
    L_op_w:
    v_cmp_u_f32 vcc, v57, v57
    v_cmp_u_f32 s[58:59], v83, v83
    s_or_b64 exec, vcc, s[58:59]
    s_cbranch_execz L_op_have
    s_sub_u32 s35, s35, 1
    s_cmp_eq_u32 s35, 0
    s_cbranch_scc1 L_op_have
    s_cbranch_vccz L_op1
    s_branch L_op
    L_op_have:""")
    stamp(14)
    a("""s_mov_b64 exec, -1
    v_max_f32_dpp v8, v56, v56 row_ror:8 row_mask:0xf bank_mask:0xf
    v_mfma_f32_16x16x32_bf16 v[48:51], v[40:43], v[112:115], 0
    v_mov_b32 v9, v8
    s_nop 1
    v_permlane16_swap_b32 v8, v9
    v_max_f32 v8, v8, v9
    v_mfma_f32_16x16x32_bf16 v[48:51], v[44:47], v[116:119], v[48:51]
    v_mov_b32 v9, v8
    s_nop 1
    v_permlane32_swap_b32 v8, v9
    v_max_f32 v8, v8, v9
    v_sub_f32 v8, v56, v8
    v_exp_f32 v8, v8
    s_nop 0
    v_mul_f32 v28, v8, v57
    v_mul_f32 v24, v80, v8
    v_mul_f32 v25, v81, v8
    v_mul_f32 v26, v82, v8
    v_mul_f32 v27, v83, v8
    v_add_f32_dpp v28, v28, v28 row_ror:8 row_mask:0xf bank_mask:0xf
    v_permlane32_swap_b32 v24, v25
    v_mov_b32 v9, v28
    v_permlane32_swap_b32 v26, v27
    v_add_f32 v24, v24, v25
    v_permlane16_swap_b32 v28, v9
    v_add_f32 v26, v26, v27
    v_add_f32 v28, v28, v9
    s_nop 0
    v_mov_b32 v9, v28
    v_permlane16_swap_b32 v24, v26
    v_add_f32 v24, v24, v26
    v_permlane32_swap_b32 v28, v9
    v_add_f32 v28, v28, v9
    v_add_f32_dpp v24, v24, v24 row_ror:8 row_mask:0xf bank_mask:0xf
    v_rcp_f32 v28, v28
    s_nop 0
    v_mul_f32 v24, v24, v28
    v_cmp_u_f32 vcc, v24, v24
    v_cvt_pk_bf16_f32 v24, v24, v24
    s_cbranch_vccz L_op_done
    s_cmp_eq_u32 s35, 0
    s_cbranch_scc1 L_op_done""")
    spin_tail("L_op")
    a("L_op_done:\ns_nop 0")
    stamp(9)
    for u in range(4): a(f"v_mov_b32_dpp v{60+u}, v24 row_newbcast:{2*u} row_mask:0xf bank_mask:0x3")
    for u in range(4): a(f"v_mov_b32_dpp v{60+u}, v24 row_newbcast:{2*u+1} row_mask:0xf bank_mask:0xc")
    for u in range(4):
        for r in range(4): a(f"v_and_b32 v{64+4*u+r}, v{60+u}, v{32+r}")
        if u: a(f"v_mfma_f32_16x16x32_bf16 v[48:51], v[{60+4*u}:{63+4*u}], v[{92+4*u}:{95+4*u}], v[48:51]")
    a(f"""s_cmp_eq_u32 s32, 0
    v_mfma_f32_16x16x32_bf16 v[48:51], v[76:79], v[108:111], v[48:51]
    s_mov_b64 exec, s[56:57]
    s_nop 6
    ds_write_b128 v21, v[48:51] offset:{L_Y}
    s_mov_b64 exec, -1
    s_waitcnt lgkmcnt(0)
    s_barrier""")
    stamp(10)
    a("s_cbranch_scc0 L_K_other")
    for k in range(4): a(f"ds_read2st64_b32 v[{8+2*k}:{9+2*k}], v22 offset0:{L_Y//256+2*k} offset1:{L_Y//256+2*k+1}")
    a(f"""s_waitcnt lgkmcnt(2)
    v_add_f32 v8, v8, v9
    v_add_f32 v10, v10, v11
    v_add_f32 v8, v8, v10
    s_waitcnt lgkmcnt(0)
    v_add_f32 v12, v12, v13
    v_add_f32 v14, v14, v15
    v_add_f32 v12, v12, v14
    v_add_f32 v22, v8, v12
    buffer_store_dwordx2 v[22:23], v19, s[40:43], s15 offen {ysf or sf}""")
    stamp(11)
    if diag == 2:
        a("""s_cmp_ge_u32 s2, 8
        s_cbranch_scc1 L_nod2
        s_memrealtime s[60:61]
        s_waitcnt lgkmcnt(0)
        s_mov_b64 exec, 1
        s_lshl_b32 s3, s2, 2
        v_mov_b32 v127, s3
        v_mov_b32 v126, s62
        global_store_dword v127, v126, s[24:25] sc1
        v_mov_b32 v125, s60
        global_store_dword v127, v125, s[24:25] offset:32 sc1
        L_nod2:""")
    write_stamps()
    a(f"""s_endpgm
    L_K_other:
    s_cmp_eq_u32 s16, 0
    s_cbranch_scc1 L_K_end
    s_mov_b32 s35, {SPIN}
    L_yp:
    buffer_load_dwordx4 v[64:67], v14, s[40:43], s46 offen {ypf or pf}
    buffer_load_dwordx4 v[68:71], v14, s[40:43], s47 offen {ypf or pf}
    s_waitcnt vmcnt(1)
    v_cmp_ne_u32 vcc, s14, v65
    v_cmp_ne_u32 s[58:59], s14, v67
    s_waitcnt vmcnt(0)
    v_cmp_ne_u32 s[18:19], s14, v69
    v_cmp_ne_u32 s[56:57], s14, v71
    s_or_b64 vcc, vcc, s[58:59]
    s_or_b64 s[18:19], s[18:19], s[56:57]
    s_or_b64 exec, vcc, s[18:19]
    s_cbranch_execz L_yp_have""")
    if ysleep: a(f"s_sleep {ysleep}")
    spin_tail("L_yp")
    a("""L_yp_have:
    s_mov_b64 exec, -1
    v_add_f32 v72, v64, v68
    v_add_f32 v73, v66, v70
    v_lshlrev_b32 v13, 16, v12
    s_nop 0
    v_permlane32_swap_b32 v72, v73
    v_add_f32 v72, v72, v73
    v_mov_b32 v73, v72
    s_nop 1
    v_permlane16_swap_b32 v72, v73
    v_add_f32 v72, v72, v73
    s_nop 1
    v_add_f32_dpp v72, v72, v72 row_ror:8 row_mask:0xf bank_mask:0xf
    s_nop 1
    v_add_f32_dpp v72, v72, v72 row_ror:4 row_mask:0xf bank_mask:0xf
    v_add_f32 v72, v72, v13
    v_cvt_pk_bf16_f32 v72, v72, v72""")
    a(f"""L_yp_done:
    s_mov_b64 exec, s[60:61]
    global_store_short v11, v72, s[22:23] {of}""")
    stamp(12)
    a(f"""s_lshl_b32 s3, s29, 2
    s_add_u32 s3, s3, s32
    s_cmp_lg_u32 s3, 1
    s_cbranch_scc1 L_K_end
    s_mov_b64 exec, 1
    v_mov_b32 v8, s14
    s_mov_b32 s3, {EB}
    buffer_store_dword v8, v1, s[40:43], s3 offen""")
    if diag == 1:
        dstamp(8, 62); dstamp(10)
    a("L_K_end:")
    write_stamps()
    a("L_end:\ns_endpgm")
    a("L_V:")
    if stamps: a("s_mov_b64 s[66:67], 0")
    common()
    a(f"""s_cmp_lg_u32 s32, 0
    s_cbranch_scc1 L_V_other
    v_lshrrev_b32 v8, 4, v2
    v_and_b32 v9, 15, v2
    s_lshl_b32 s3, s30, 6
    v_lshl_add_u32 v10, v8, 4, s3
    v_lshlrev_b32 v11, 13, v10
    v_lshl_add_u32 v11, v9, 4, v11
    s_lshl_b32 s46, s29, 8
    s_waitcnt lgkmcnt(0)
    global_load_dwordx4 v[4:7], v3, s[4:5]""")
    stamp(1)
    srd(48, 10, 0x400000)
    for t in range(16):
        if t: a(f"s_add_u32 s46, s46, 8192")
        if v0win and t >= v0win: a(f"s_waitcnt vmcnt({v0win-1})")
        if "w" not in abl: a(f"buffer_load_dwordx4 v[{128+4*t}:{131+4*t}], v11, s[48:51], s46 offen {wflag}")
    epoch_load()
    ffn_split()
    a(f"""v_and_b32 v12, 7, v9
    s_sub_u32 s3, s60, 1
    v_min_u32 v12, s3, v12
    v_add_u32 v12, s61, v12
    v_min_u32 v12, 171, v12
    v_mul_u32_u24 v13, 2752, v10
    v_lshl_add_u32 v12, v12, 4, v13
    v_add_u32 v12, 2752, v12
    v_mov_b32 v13, 0
    v_cmp_lt_u32 vcc, 7, v9
    v_mov_b32 v14, s16
    v_mov_b32 v15, s17
    v_mov_b32 v16, s18
    v_mov_b32 v17, s19
    v_cndmask_b32 v14, v14, v16, vcc
    v_cndmask_b32 v15, v15, v17, vcc
    v_lshl_add_u64 v[14:15], v[12:13], 0, v[14:15]
    s_mov_b64 s[52:53], 8256""")
    a("v_mov_b32 v64, v14\nv_mov_b32 v65, v15")
    def gu_issue():
        for t in range(16):
            if t % 3 == 0 and t: a("v_lshl_add_u64 v[64:65], v[64:65], 0, s[52:53]")
            if v0win and not gu_late: a(f"s_waitcnt vmcnt({v0win-1})")
            a(f"global_load_dwordx4 v[{192+4*t}:{195+4*t}], v[64:65], off offset:{(t%3-1)*2752} {wflag}")
    if not gu_late: gu_issue()
    stamp(2)
    def selectors():
        a("""s_mov_b32 s40, s26
        s_mov_b32 s41, s27
        v_and_b32 v8, 1, v2
        v_mov_b32 v9, 0x0c0c0100
        v_mov_b32 v10, 0x01000c0c
        v_cmp_eq_u32 vcc, 1, v8
        v_mov_b32 v11, 0x0c0c0302
        v_mov_b32 v12, 0x03020c0c
        v_cndmask_b32 v9, v9, v10, vcc
        v_cndmask_b32 v11, v11, v12, vcc
        v_bfe_u32 v8, v2, 1, 3
        v_mov_b32 v10, 0x0c0c0c0c""")
        for r in range(4):
            a(f"v_cmp_eq_u32 vcc, {r}, v8\ns_nop 1\nv_cndmask_b32 v{32+2*r}, v10, v9, vcc\nv_cndmask_b32 v{33+2*r}, v10, v11, vcc")
        a("""v_and_b32 v9, 15, v2
        v_lshlrev_b32 v9, 5, v9
        v_and_b32 v10, 16, v2
        v_add_u32 v31, v9, v10""")
    selectors()
    a(f"s_waitcnt vmcnt({16 if gu_late else 32})")
    if gu_late == 1: gu_issue()
    stamp(3)
    for k in range(4):
        a(f"v_lshlrev_b32 v{8+2*k}, 16, v{4+k}\nv_and_b32 v{9+2*k}, 0xffff0000, v{4+k}")
    a("""v_add_f32 v16, v8, v9
    v_add_f32 v17, v10, v11
    v_add_f32 v18, v12, v13
    v_add_f32 v19, v14, v15
    v_add_f32 v16, v16, v17
    v_add_f32 v18, v18, v19
    v_add_f32 v16, v16, v18""")
    allred("v_add_f32", 16, 17)
    a("v_mul_f32 v16, 0x3b000000, v16")
    a("v_sub_f32 v18, v8, v16\nv_mul_f32 v17, v18, v18")
    for k in range(1, 8): a(f"v_sub_f32 v18, v{8+k}, v16\nv_fmac_f32 v17, v18, v18")
    allred("v_add_f32", 17, 18)
    a("""v_mul_f32 v17, 0x3b000000, v17
    v_cvt_pk_bf16_f32 v16, v16, v17
    v_and_b32 v17, 0xffff0000, v16
    v_lshlrev_b32 v16, 16, v16
    v_add_f32 v17, 0x3727c5ac, v17
    v_cvt_pk_bf16_f32 v17, v17, v17
    v_and_b32 v17, 0xffff0000, v17
    v_sqrt_f32 v17, v17
    s_nop 0
    v_cvt_pk_bf16_f32 v17, v17, v17
    v_and_b32 v17, 0xffff0000, v17
    v_rcp_f32 v18, v17""")
    for k in range(4):
        lo, hi = 8 + 2 * k, 9 + 2 * k
        a(f"""v_sub_f32 v{lo}, v{lo}, v16
        v_sub_f32 v{hi}, v{hi}, v16
        v_cvt_pk_bf16_f32 v19, v{lo}, v{hi}
        v_lshlrev_b32 v{lo}, 16, v19
        v_and_b32 v{hi}, 0xffff0000, v19
        v_mul_f32 v19, v{lo}, v18
        v_mul_f32 v20, v{hi}, v18
        v_fma_f32 v{lo}, -v19, v17, v{lo}
        v_fma_f32 v{hi}, -v20, v17, v{hi}
        v_fma_f32 v19, v{lo}, v18, v19
        v_fma_f32 v20, v{hi}, v18, v20
        v_cvt_pk_bf16_f32 v{4+k}, v19, v20""")
    a(f"""ds_write_b128 v3, v[4:7] offset:{L_XN}
    v_lshrrev_b32 v8, 4, v2
    s_lshl_b32 s3, s30, 7
    v_lshl_add_u32 v8, v8, 5, s3
    s_waitcnt lgkmcnt(0)
    ds_read_b128 v[16:19], v8 offset:{L_XN}
    ds_read_b128 v[20:23], v8 offset:{L_XN+16}
    s_add_u32 s14, s14, 1
    s_mul_i32 s46, s47, {QREC}
    s_add_u32 s46, s46, {QA}
    s_getreg_b32 s3, hwreg(HW_REG_XCC_ID, 0, 4)
    v_mov_b32 v57, s14
    v_mov_b32 v59, s14
    v_mov_b32 v61, s14
    v_mov_b32 v63, s14
    v_mov_b32 v24, s3
    v_cmp_gt_u32 vcc, 32, v2
    v_lshlrev_b32 v25, 1, v31
    v_add_u32 v26, 512, v3
    s_waitcnt lgkmcnt(0)
    v_cndmask_b32 v26, v26, v25, vcc""")
    stamp(4)
    def chain(base, D, wait):
        for t in range(16):
            A = 40 + 4 * (t & 1)
            for r in range(4): a(f"v_perm_b32 v{A+r}, v{16+t//2}, v{16+t//2}, v{32+2*r+(t&1)}")
            if t == 0: a(f"s_nop 0\ns_waitcnt vmcnt({wait})")
            else: a("s_nop 1")
            a(f"v_mfma_f32_16x16x32_bf16 v[{D}:{D+3}], v[{A}:{A+3}], v[{base+4*t}:{base+3+4*t}], {'0' if t == 0 else f'v[{D}:{D+3}]'}")
    if gu_late == 2:
        a("s_waitcnt vmcnt(0)")
        gu_issue()
    chain(128, 48, 16)
    lds_wait("clr", F_CLR, 4, 1)
    a(f"""s_nop 1
    v_cndmask_b32 v56, v24, v48, vcc
    v_cndmask_b32 v58, v24, v49, vcc
    v_mov_b32 v60, v50
    v_mov_b32 v62, v51
    s_mov_b32 exec_hi, 0xff
    buffer_store_dwordx4 v[56:59], v26, s[40:43], s46 offen
    ds_write_b128 v26, v[56:59] offset:{L_QI}
    s_mov_b32 exec_hi, 0
    buffer_store_dwordx4 v[60:63], v25, s[40:43], s46 offen offset:16
    ds_write_b128 v25, v[60:63] offset:{L_QI+16}
    s_mov_b32 exec_hi, -1""")
    stamp(5)
    chain(192, 52, 2)
    a(f"""s_mov_b32 exec_hi, 0
    s_nop 6
    buffer_store_dwordx4 v[52:55], v31, s[40:43], s45 offen offset:{GU}
    ds_write_b128 v31, v[52:55] offset:{L_GU}
    s_mov_b32 exec_hi, -1
    s_waitcnt lgkmcnt(0)
    ds_write_b32 v1, v0 offset:{F_G}""")
    stamp(6)
    a("s_branch L_V_load\nL_V_other:\ns_waitcnt lgkmcnt(0)")
    if touch:
        a("""s_cmp_lg_u32 s32, 1
        s_cbranch_scc1 L_notouch
        s_load_dword s48, s[8:9], s33
        s_lshl_b32 s3, s29, 17
        s_load_dword s49, s[12:13], s3
        s_mul_i32 s3, s29, 44032
        s_load_dword s50, s[20:21], s3
        s_load_dword s51, s[22:23], 0
        L_notouch:""")
    selectors()
    a(f"""L_V_load:
    s_mov_b32 s36, s8
    s_mov_b32 s37, s9
    v_lshrrev_b32 v8, 4, v2
    s_lshl_b32 s3, s32, 8
    v_lshl_add_u32 v28, v8, 6, s3
    s_lshl_b32 s3, s32, 3
    v_mov_b32 v29, s3
    s_lshl_b32 s3, s32, 9
    v_add_u32 v30, s3, v31""")
    if buddy:
        a(f"s_xor_b32 s17, s30, {buddy}\ns_mov_b32 s18, s17")
        w_addr("s18")
    lds_wait("gate", F_GATE, 4, 1)
    stamp(8)
    bulk(WV, {wo_at: [lambda: lds_sig(F_VI)]}, 99, WV2, ramp)
    stamp(9)
    lds_wait("pw", F_P, 4, 1)
    stamp(10)
    for k in range(4): a(f"ds_read_b128 v[{56+4*k}:{59+4*k}], v28 offset:{L_P+16*k}")
    a(f"""ds_read_b32 v52, v29 offset:{L_ML}
    ds_read_b128 v[8:11], v1 offset:{L_ML}
    ds_read_b128 v[12:15], v1 offset:{L_ML+16}
    s_waitcnt lgkmcnt(0)
    v_max_f32 v8, v8, v10
    v_max3_f32 v8, v8, v12, v14
    v_sub_f32 v52, v52, v8
    v_exp_f32 v52, v52""")
    for t in range(32):
        A = 40 + 4 * (t & 1)
        for r in range(4): a(f"v_perm_b32 v{A+r}, v{56+t//2}, v{56+t//2}, v{32+2*r+(t&1)}")
        a(f"s_nop 0\ns_waitcnt vmcnt({31-t})" if t >= 32 - max(WV, WV2 or 0) else "s_nop 1")
        a(f"v_mfma_f32_16x16x32_bf16 v[48:51], v[{A}:{A+3}], v[{128+4*t}:{131+4*t}], {'0' if t == 0 else 'v[48:51]'}")
    stamp(11)
    a("s_mov_b32 exec_hi, 0\ns_nop 6")
    for k in range(4): a(f"v_mul_f32 v{48+k}, v{48+k}, v52")
    a(f"ds_write_b128 v30, v[48:51] offset:{L_O}\ns_waitcnt lgkmcnt(0)\ns_barrier")
    write_stamps()
    a("s_endpgm")
    bad = lint(a.L)
    for b in bad[:6]: print("HAZARD need %d have %d:\n   %s\n   %s" % (b[2], b[3], b[0], b[1]), file=sys.stderr)
    return a.text() + footer()

if __name__ == "__main__":
    B = dict(WK=7, WV=8, qp_at=29, gate_at=29)
    V = {"v27": dict(B), "v27_a": dict(B, wd_early=True), "v27_b": dict(B, wo_at=30), "v27_c": dict(B, local=False), "v27_d": dict(B, WV=7), "v27_e": dict(B, ne=8, nl=3)}
    for n, kw in V.items():
        open(f"exp/{n}.s", "w").write(gen(**kw))
        open(f"exp/{n}_st.s", "w").write(gen(stamps=True, **kw))
        open(f"exp/{n}_dg.s", "w").write(gen(diag=True, **kw))
```
